```python
import torch

def _softmax(x, axis=-1):
    return torch.softmax(x, dim=axis)
def _gelu(x):
    return torch.nn.functional.gelu(x, approximate="tanh")
def _silu(x):
    return torch.nn.functional.silu(x)
def _sigmoid(x):
    return torch.sigmoid(x)
def _layernorm(x, axis=-1, eps=1e-5):
    m = x.mean(dim=axis, keepdim=True)
    v = x.var(dim=axis, keepdim=True, unbiased=False)
    return (x - m) / torch.sqrt(v + eps)
def _scatter_add(tgt, idx, src, axis=0):
    return tgt.clone().index_add_(axis, idx, src)
def _segment_sum(src, seg, n):
    out = torch.zeros((n,) + src.shape[1:], dtype=src.dtype)
    return out.index_add_(0, seg, src)
def _pad(x, pw):
    flat = tuple(v for pair in reversed(pw) for v in pair)
    return torch.nn.functional.pad(x, flat)

kernel_name = 'standalone__deep_cross_wide_deep__recsys'

def setup_inputs():

    _w = (lambda a: (lambda t: t.to(torch.bfloat16) if t.is_floating_point() else t)(torch.as_tensor(a)))
    B, F, D = 4096, 26, 128
    V, Nd = min(1000, 100000), 13
    Din = F * D
    H = 4 * D
    return {
        "idx": _w((lambda lo, hi, *s: torch.randint(lo, hi, s))(0, V, B, F).to(torch.int64)),
        "table": _w((lambda *s: torch.randn(*s, dtype=torch.bfloat16) * 1.6)(V, D) * 0.05),
        "x_wide": _w((lambda *s: torch.randn(*s, dtype=torch.bfloat16) * 1.6)(B, Nd)),
        "w_wide": _w((lambda *s: torch.randn(*s, dtype=torch.bfloat16) * 1.6)(Nd) * 0.05),
        "b_wide": _w((lambda *s: torch.randn(*s, dtype=torch.bfloat16) * 1.6)(1) * 0.01),
        "W1": _w((lambda *s: torch.randn(*s, dtype=torch.bfloat16) * 1.6)(Din, H) * (2.0 / Din) ** 0.5),
        "b1": _w((lambda *s: torch.randn(*s, dtype=torch.bfloat16) * 1.6)(H) * 0.01),
        "W2": _w((lambda *s: torch.randn(*s, dtype=torch.bfloat16) * 1.6)(H) * (1.0 / H) ** 0.5),
        "b2": _w((lambda *s: torch.randn(*s, dtype=torch.bfloat16) * 1.6)(1) * 0.01),
    }

def reference(idx, table, x_wide, w_wide, b_wide, W1, b1, W2, b2):
    emb = table[idx]
    deep_in = emb.reshape(emb.shape[0], -1)
    h = deep_in @ W1 + b1
    h = h * (lambda x, dt: x.to(dt))(h > 0, h.dtype)
    deep_logit = h @ W2 + b2
    wide_logit = x_wide @ w_wide + b_wide
    return _sigmoid(wide_logit + deep_logit)
```

```python
import sys, argparse

NAME = "standalone__deep_cross_wide_deep__recsys"

HEADER = open("cdna_kernels/%s.s.ref" % NAME).read().split("; @launch")[0]

SLOT = 64512
SPARE = 163840 - 2 * SLOT
S1 = SPARE
S0 = SPARE + SLOT
Q3B = 0
IDXB = 0
EXB = SLOT
LDS_TOTAL = 163840

S_IDX, S_TAB, S_W1, S_XW, S_B1, S_W2, S_OUT, S_DBG, S_WS = 28, 32, 36, 40, 44, 48, 52, 56, 60
sW, sNS, sMT = 64, 65, 66
sW4 = 67
sS1 = 68
sSEL0, sSEL1 = 69, 70
sOFF = 71
sWW = 72
sBW, sB2 = 79, 80
sT0, sT1, sT2, sT3 = 81, 82, 83, 84
sWM, sWO, sWM15, sWO15 = 85, 86, 87, 88
sDO = 89
sHI = 90
sSTAMP = 92

vTID, vLANE, vW1, vTAB, vJ, vSLOT, vEXW, vEXR = 0, 1, 2, 3, 4, 5, 6, 7
vT = 10
vADDR = 16
vPK = 72
vRAW = 88
vPF, vTAB64 = 255, 254
AACC = 0
AFR = 128


def srd(n):
    return "s[%d:%d]" % (n, n + 3)


def vr(n, c=1):
    return "v%d" % n if c == 1 else "v[%d:%d]" % (n, n + c - 1)


def ar(n, c=1):
    return "a%d" % n if c == 1 else "a[%d:%d]" % (n, n + c - 1)


class E:
    def __init__(self):
        self.L = []
        self.vm = 0
        self.lg = 0
        self.vtag = {}
        self.ltag = {}
        self.vdone = 0
        self.ldone = 0
        self.last_m0 = False

    def op(self, t):
        self.L.append("    " + t)
        self.last_m0 = t.split()[1].startswith("m0") if len(t.split()) > 1 and t.startswith("s_") else False

    def label(self, t):
        self.L.append(t + ":")

    def c(self, t):
        self.L.append("    ; " + t)

    def vmem(self, t, tag=None, count=True):
        if t.endswith("lds") and self.last_m0:
            self.op("s_nop 0")
        self.op(t)
        if count:
            self.vm += 1
            if tag is not None:
                self.vtag[tag] = self.vm

    def lds(self, t, tag=None):
        self.op(t)
        self.lg += 1
        if tag is not None:
            self.ltag[tag] = self.lg

    def wait(self, v=None, l=None):
        parts = []
        if v is not None:
            idx = self.vm if v == "all" else self.vtag[v]
            if idx > self.vdone:
                n = min(self.vm - idx, 63)
                parts.append("vmcnt(%d)" % n)
                self.vdone = self.vm - n
        if l is not None:
            idx = self.lg if l == "all" else self.ltag[l]
            if idx > self.ldone:
                n = min(self.lg - idx, 15)
                parts.append("lgkmcnt(%d)" % n)
                self.ldone = self.lg - n
        if parts:
            self.op("s_waitcnt " + " ".join(parts))
            return True
        return False


NSTEP = 52


def gen(o):
    e = E()
    R = o.ring
    assert vRAW + 8 * R <= 256
    vB1F = 16
    vB1R = 48
    stamps = []

    def stamp(name):
        if not o.stamp:
            return
        k = len(stamps)
        assert k < 5
        stamps.append(name)
        e.op("s_memtime s[%d:%d]" % (sSTAMP + 2 * k, sSTAMP + 2 * k + 1))

    e.op("s_cmp_ge_u32 s2, 256")
    e.op("s_cbranch_scc1 L_end")
    e.op("s_load_dwordx16 s[4:19], s[0:1], 0")
    e.op("s_load_dwordx8 s[20:27], s[0:1], 64")
    stamp("start")
    e.op("v_lshrrev_b32 v10, 6, v0")
    e.op("v_and_b32 v%d, 63, v0" % vLANE)
    e.op("v_readfirstlane_b32 s%d, v10" % sW)
    if o.nsmap == 0:
        e.op("s_and_b32 s%d, s2, 7" % sNS)
        e.op("s_lshr_b32 s%d, s2, 3" % sMT)
    else:
        e.op("s_lshr_b32 s%d, s2, 5" % sNS)
        e.op("s_and_b32 s%d, s2, 31" % sMT)
    e.op("v_and_b32 v%d, 31, v0" % vJ)
    e.op("s_mov_b32 s%d, %d" % (sS1, S1))
    e.op("s_mov_b32 s%d, 0x05040100" % sSEL0)
    e.op("s_mov_b32 s%d, 0x07060302" % sSEL1)
    e.op("s_mov_b32 s%d, 0xffff0000" % sHI)
    e.op("s_lshl_b32 s%d, s%d, 2" % (sW4, sW))
    e.op("s_lshl_b32 s%d, s%d, 10" % (sWM, sW))
    e.op("s_lshl_b32 s%d, s%d, 12" % (sWO, sW))
    e.op("s_min_u32 s%d, s%d, 2" % (sT0, sW))
    e.op("s_lshl_b32 s%d, s%d, 10" % (sWM15, sT0))
    e.op("s_lshl_b32 s%d, s%d, 12" % (sWO15, sT0))
    e.op("s_mul_i32 s%d, s%d, 13312" % (sT0, sMT))
    e.op("s_add_u32 s%d, s%d, s%d" % (sT0, sT0, sWO))
    e.op("v_lshlrev_b32 v11, 4, v%d" % vLANE)
    e.op("v_add_u32 v11, s%d, v11" % sT0)
    e.op("s_lshl_b32 s%d, s%d, 3" % (sT1, sMT))
    e.op("s_add_u32 s%d, s%d, s%d" % (sT1, sT1, sNS))
    e.op("s_lshl_b32 s%d, s%d, 9" % (sT1, sT1))
    e.op("s_lshl_b32 s%d, s%d, 7" % (sT2, sW))
    e.op("s_add_u32 s%d, s%d, s%d" % (sT1, sT1, sT2))
    e.op("v_lshlrev_b32 v%d, 2, v%d" % (vSLOT, vJ))
    e.op("v_add_u32 v%d, s%d, v%d" % (vSLOT, sT1, vSLOT))
    e.op("v_mov_b32 v12, -1")
    e.op("v_lshrrev_b32 v13, 4, v%d" % vLANE)
    e.op("v_sub_u32 v13, v%d, v13" % vLANE)
    e.op("v_and_b32 v13, 3, v13")
    e.op("v_lshlrev_b32 v13, 4, v13")
    e.op("v_lshrrev_b32 v14, 2, v%d" % vLANE)
    e.op("v_lshl_add_u32 v%d, v14, 8, v13" % vTAB)
    e.op("v_add_u32 v%d, 64, v%d" % (vTAB64, vTAB))
    e.op("v_lshrrev_b32 v13, 5, v%d" % vLANE)
    e.op("s_mov_b32 s%d, %d" % (sT2, 13 * 128 * 1024))
    e.op("v_mul_lo_u32 v13, v13, s%d" % sT2)
    e.op("v_bfe_u32 v14, v%d, 4, 1" % vLANE)
    e.op("v_lshl_add_u32 v13, v14, 12, v13")
    e.op("v_and_b32 v14, 15, v%d" % vLANE)
    e.op("v_lshl_add_u32 v13, v14, 3, v13")
    e.op("s_lshl_b32 s%d, s%d, 13" % (sT2, sW))
    e.op("s_lshl_b32 s%d, s%d, 7" % (sT3, sNS))
    e.op("s_add_u32 s%d, s%d, s%d" % (sT2, sT2, sT3))
    e.op("v_add_u32 v%d, s%d, v13" % (vW1, sT2))
    e.op("s_lshl_b32 s%d, s%d, 2" % (sT2, sMT))
    e.op("s_add_u32 s%d, s%d, s%d" % (sT2, sT2, sW))
    e.op("s_mul_i32 s%d, s%d, 26" % (sT0, sT2))
    e.op("v_min_u32 v13, 25, v%d" % vLANE)
    e.op("v_add_u32 v13, s%d, v13" % sT0)
    e.op("v_lshlrev_b32 v13, 10, v13")
    e.op("v_add_u32 v13, s%d, v13" % sT3)
    e.op("s_lshl_b32 s%d, s%d, 11" % (sT0, sT2))
    e.op("v_lshlrev_b32 v14, 7, v14")
    e.op("v_add_u32 v14, s%d, v14" % sT0)
    e.op("s_waitcnt lgkmcnt(0)")
    for (sd, sp, nb) in [(S_WS, 26, 0x100000), (S_IDX, 4, 4096 * 104), (S_TAB, 6, 256000), (S_W1, 14, 3328 * 1024)]:
        e.op("s_mov_b32 s%d, s%d" % (sd, sp))
        e.op("s_mov_b32 s%d, s%d" % (sd + 1, sp + 1))
        e.op("s_mov_b32 s%d, %d" % (sd + 2, nb))
        e.op("s_mov_b32 s%d, 0x00020000" % (sd + 3))
    e.op("s_add_u32 m0, s%d, %d" % (sWO, IDXB))
    e.vmem("buffer_store_dword v12, v%d, %s, 0 offen sc1" % (vSLOT, srd(S_WS)), "marker")
    for k in range(4):
        e.vmem("buffer_load_dwordx4 v11, %s, 0 offen offset:%d lds" % (srd(S_IDX), 1024 * k), "idx%d" % k)
    if o.prefetch:
        e.vmem("buffer_load_dword v%d, v13, %s, 0 offen" % (vPF, srd(S_W1)))
        e.vmem("buffer_load_dword v%d, v14, %s, 0 offen" % (vPF, srd(S_TAB)))
    e.op("s_load_dwordx4 s[%d:%d], s[10:11], 0" % (sWW, sWW + 3))
    e.op("s_load_dwordx2 s[%d:%d], s[10:11], 16" % (sWW + 4, sWW + 5))
    e.op("s_load_dword s%d, s[10:11], 24" % (sWW + 6))
    e.op("s_load_dword s%d, s[12:13], 0" % sBW)
    e.op("s_load_dword s%d, s[20:21], 0" % sB2)

    w1next = [0]
    cur_soff = [None]

    def w1_items(n):
        items = []
        for _ in range(n):
            k = w1next[0]
            if k >= NSTEP * 4:
                break
            w1next[0] += 1
            s, r = divmod(k, 4)
            q, f = divmod(s, 13)
            so = f * 131072 + q * 32768
            if cur_soff[0] != so:
                cur_soff[0] = so
                items.append(("s", lambda so=so: e.op("s_mov_b32 s%d, %d" % (sOFF, so))))
            dst = vRAW + (s % R) * 8 + r * 2
            items.append(("v", lambda dst=dst, r=r, s=s: e.vmem(
                "buffer_load_dwordx2 %s, v%d, %s, s%d offen offset:%d" % (vr(dst, 2), vW1, srd(S_W1), sOFF, r * 1024),
                "w1_%d_%d" % (s, r)), s))
        return items

    def run(items):
        for it in items:
            it[1]()

    run(w1_items(4 * o.pre1))
    e.op("s_lshl_b32 s%d, s%d, 2" % (sT0, sMT))
    e.op("s_add_u32 s%d, s%d, s%d" % (sT0, sT0, sW))
    e.op("s_and_b32 s%d, s%d, 63" % (sT0, sT0))

    def rot_dma(first, second):
        for i in range(16):
            if i:
                e.op("s_add_u32 s%d, s%d, 4" % (sT0, sT0))
                e.op("s_and_b32 s%d, s%d, 63" % (sT0, sT0))
            e.op("s_min_u32 s%d, s%d, 62" % (sT1, sT0))
            e.op("s_lshl_b32 s%d, s%d, 10" % (sT2, sT1))
            (lb, qo, tg) = first
            e.op("s_add_u32 m0, s%d, %d" % (sT2, lb))
            e.op("s_lshl_b32 s%d, s%d, 12" % (sDO, sT1))
            e.vmem("buffer_load_dwordx4 v%d, %s, s%d offen lds" % (vTAB64 if qo else vTAB, srd(S_TAB), sDO), tg)
            if second:
                (lb, qo, tg) = second
                e.op("s_add_u32 m0, s%d, %d" % (sT2, lb))
                e.vmem("buffer_load_dwordx4 v%d, %s, s%d offen lds" % (vTAB64 if qo else vTAB, srd(S_TAB), sDO), tg)
        e.op("s_add_u32 s%d, s%d, 4" % (sT0, sT0))
        e.op("s_and_b32 s%d, s%d, 63" % (sT0, sT0))

    if o.pair0:
        rot_dma((S0, 0, "q0"), (S1, 64, "q1"))
    else:
        rot_dma((S0, 0, "q0"), None)
    for (sd, sp, nb) in [(S_XW, 8, 4096 * 26), (S_B1, 16, 1024), (S_W2, 18, 1024), (S_OUT, 22, 8192), (S_DBG, 24, 256)]:
        e.op("s_mov_b32 s%d, s%d" % (sd, sp))
        e.op("s_mov_b32 s%d, s%d" % (sd + 1, sp + 1))
        e.op("s_mov_b32 s%d, %d" % (sd + 2, nb))
        e.op("s_mov_b32 s%d, 0x00020000" % (sd + 3))
    e.op("v_lshrrev_b32 v13, 5, v%d" % vLANE)
    e.op("v_lshl_add_u32 v13, v%d, 1, v13" % vJ)
    e.op("v_mul_u32_u24 v13, 52, v13")
    e.op("v_lshlrev_b32 v14, 4, v%d" % vLANE)
    EXW = [6, 8, 9]
    IDXA = [10, 11, 12, 13]
    for tau in range(4):
        e.op("s_add_u32 s%d, s%d, %d" % (sT1, sW, 1 + tau))
        e.op("s_and_b32 s%d, s%d, 3" % (sT1, sT1))
        e.op("s_mul_i32 s%d, s%d, 3328" % (sT2, sT1))
        e.op("s_mul_i32 s%d, s%d, 24576" % (sT3, sT1))
        e.op("s_add_u32 s%d, s%d, %d" % (sT3, sT3, EXB + (tau * 8192 if tau < 3 else 0)))
        if tau < 3:
            e.op("v_add_u32 v%d, s%d, v14" % (EXW[tau], sT3))
        else:
            e.op("v_add_u32 v%d, s%d, v14" % (vEXR, sT3))
        e.op("v_add_u32 v%d, s%d, v13" % (IDXA[tau], sT2))
    e.wait(v="idx3")
    e.op("s_barrier")
    stamp("idx")
    if not o.pair0:
        rot_dma((S1, 64, "q1"), None)
    run(w1_items(4 * (o.pre2 - o.pre1)))
    e.op("s_cmp_lg_u32 s%d, 0" % sW)
    e.op("s_cbranch_scc1 L_nosig")
    e.op("s_lshl_b32 s%d, s%d, 3" % (sT1, sMT))
    e.op("v_mov_b32 v14, s%d" % sT1)
    e.op("v_mov_b32 v15, 1")
    e.op("s_mov_b64 exec, 1")
    e.vmem("buffer_atomic_add v15, v14, %s, 0 offen sc1" % srd(S_DBG), count=False)
    e.op("s_mov_b64 exec, -1")
    e.label("L_nosig")
    e.op("s_waitcnt lgkmcnt(0)")
    for tau in range(4):
        for p in range(7):
            e.lds("ds_read2_b32 %s, v%d offset0:%d offset1:%d" % (vr(vADDR + tau * 14 + 2 * p, 2), IDXA[tau], 2 * p, 2 * p + 1),
                  "ix%d_%d" % (tau, p))
    for p in range(7):
        for tau in range(4):
            e.wait(l="ix%d_%d" % (tau, p))
            for f in (2 * p, 2 * p + 1):
                if f >= 13:
                    continue
                a = vADDR + tau * 14 + f
                t = vADDR + tau * 14 + 13 if p < 6 else 14
                t = 14 + (f & 1)
                e.op("v_add_lshl_u32 v%d, v%d, s%d, 2" % (t, a, sW4))
                e.op("v_and_or_b32 v%d, v%d, 48, s%d" % (t, t, sS1))
                e.op("v_lshl_add_u32 v%d, v%d, 6, v%d" % (a, a, t))

    def pack_items(s):
        b = vRAW + (s % R) * 8
        pk = vPK + (s & 1) * 8
        X = [b + 0, b + 2, b + 4, b + 6, b + 1, b + 3, b + 5, b + 7]

        def sw(r):
            return lambda: e.op("v_permlane16_swap_b32 v%d, v%d" % (b + 2 * r, b + 2 * r + 1))

        def pm(p, t):
            return lambda: e.op("v_perm_b32 v%d, v%d, v%d, s%d" % (pk + t * 4 + p, X[2 * p + 1], X[2 * p], sSEL1 if t else sSEL0))
        w = lambda: e.wait(v="w1_%d_3" % s)
        return [[w, sw(0), sw(1)], [pm(0, 0), pm(0, 1)], [pm(2, 0), pm(2, 1), sw(2), sw(3)], [pm(1, 0), pm(1, 1)],
                [pm(3, 0), pm(3, 1)]]

    def aread(s, tau):
        q, f = divmod(s, 13)
        off = {0: SLOT, 1: 0, 2: SLOT, 3: 0}[q]
        a = vADDR + tau * 14 + f
        e.lds("ds_read_b128 %s, v%d offset:%d" % (ar(AFR + (s & 1) * 16 + tau * 4, 4), a, off), "a%d_%d" % (s, tau))
        if q == 2:
            e.op("v_subrev_u32 v%d, s%d, v%d" % (a, sS1, a))

    for g in pack_items(0):
        for it in g:
            it()
    e.wait(v="q1" if o.pair0 else "q0")
    e.op("s_barrier")
    stamp("q0")
    for s in (0, 1):
        for tau in range(4):
            aread(s, tau)

    def dma_items(i, lb, qo, tag):
        m, oo = (sWM15, sWO15) if i == 15 else (sWM, sWO)
        return [("s", lambda: e.op("s_add_u32 m0, s%d, %d" % (m, lb + i * 4096))),
                ("s", lambda: e.op("s_add_u32 s%d, s%d, %d" % (sDO, oo, i * 16384 + (qo & 128)))),
                ("v", lambda: e.vmem("buffer_load_dwordx4 v%d, %s, s%d offen lds" % (vTAB64 if qo & 64 else vTAB, srd(S_TAB), sDO), tag))]

    def dma_second(i, lb, qo, tag):
        return [("s", lambda: e.op("s_add_u32 m0, s%d, %d" % (sWM, lb + i * 4096))),
                ("v", lambda: e.vmem("buffer_load_dwordx4 v%d, %s, s%d offen lds" % (vTAB64 if qo & 64 else vTAB, srd(S_TAB), sDO), tag))]

    dma_plan = {s: [] for s in range(NSTEP)}
    units = []
    for i in range(8):
        units.append(dma_items(i, S0, 128, "q2") + dma_second(i, Q3B, 192, "q3a"))
        units.append(dma_items(8 + i, S0, 128, "q2"))
    st = list(range(12, o.p1end + 1))
    for k, u in enumerate(units):
        dma_plan[st[k * len(st) // len(units)]] += u
    st = list(range(25, o.p2end + 1))
    for k in range(8):
        dma_plan[st[k * len(st) // 8]] += dma_items(8 + k, Q3B, 192, "q3b")

    def w1count(s):
        if s < 11:
            return o.w1p0
        if s <= o.p1end:
            return o.w1p1
        return o.w1p2

    vW2 = vRAW + 0
    CAP = 5
    BAR = {11: ("q1",), 24: ("q2", "q3a"), 37: ("q3b",)}
    late = {}

    top = max(vRAW + 8 * R, vRAW + 96)
    assert top + 16 + 16 + 8 + 2 <= 254, "no room for late operands"
    vB1R = top
    vW2 = top + 16
    vXW = top + 32
    vCNT = top + 40
    vLA = top + 41

    def late_items():
        it = []
        it.append(("s", lambda: e.op("v_lshrrev_b32 v%d, 5, v%d" % (vLA, vLANE))))
        it.append(("s", lambda: e.op("v_lshlrev_b32 v%d, 5, v%d" % (vLA, vLA))))
        it.append(("s", lambda: e.op("s_lshl_b32 s%d, s%d, 7" % (sT0, sNS))))
        for k, off in enumerate((0, 16, 64, 80)):
            it.append(("v", lambda k=k, off=off: e.vmem("buffer_load_dwordx4 %s, v%d, %s, s%d offen offset:%d" % (
                vr(vB1R + 4 * k, 4), vLA, srd(S_B1), sT0, off), "b1")))
        for k, off in enumerate((0, 16, 64, 80)):
            it.append(("v", lambda k=k, off=off: e.vmem("buffer_load_dwordx4 %s, v%d, %s, s%d offen offset:%d" % (
                vr(vW2 + 4 * k, 4), vLA, srd(S_W2), sT0, off), "w2")))
        it.append(("s", lambda: e.op("s_lshl_b32 s%d, s%d, 2" % (sT1, sMT))))
        it.append(("s", lambda: e.op("s_add_u32 s%d, s%d, s%d" % (sT1, sT1, sW))))
        it.append(("s", lambda: e.op("s_mul_i32 s%d, s%d, %d" % (sT1, sT1, 32 * 26))))
        it.append(("s", lambda: e.op("v_mul_u32_u24 v10, 26, v%d" % vJ)))
        it.append(("s", lambda: e.op("v_and_b32 v10, -4, v10")))
        it.append(("v", lambda: e.vmem("buffer_load_dwordx4 %s, v10, %s, s%d offen" % (vr(vXW, 4), srd(S_XW), sT1), "xw0")))
        it.append(("v", lambda: e.vmem("buffer_load_dwordx3 %s, v10, %s, s%d offen offset:16" % (vr(vXW + 4, 3), srd(S_XW), sT1), "xw")))
        it.append(("s", lambda: e.op("s_lshl_b32 s%d, s%d, 3" % (sT2, sMT))))
        it.append(("s", lambda: e.op("v_mov_b32 v11, s%d" % sT2)))
        it.append(("v", lambda: e.vmem("buffer_load_dword v%d, v11, %s, 0 offen sc1" % (vCNT, srd(S_DBG)), "cnt")))
        return it

    LATE = late_items()
    late_steps = [44, 45, 46, 47]
    for k, s in enumerate(late_steps):
        late[s] = LATE[k * len(LATE) // len(late_steps):(k + 1) * len(LATE) // len(late_steps)]

    def b1_items():
        it = [("s", lambda: e.wait(v="b1"))]
        for i in range(16):
            a, ee = (i >> 2) & 1, 2 * (i & 3) + (i >> 3)
            src = vB1R + a * 8 + ee
            it.append(("s", lambda i=i, src=src: e.op("v_lshlrev_b32 v%d, 16, v%d" % (vB1F + i, src))))
            it.append(("s", lambda i=i, src=src: e.op("v_and_b32 v%d, s%d, v%d" % (vB1F + 16 + i, sHI, src))))
        return it
    B1I = b1_items()
    late[50] = B1I[:21]
    late[51] = B1I[21:]

    def exw(tau):
        return [("v", lambda k=k: e.lds("ds_write_b128 v%d, %s offset:%d" % (EXW[tau], ar(AACC + tau * 32 + 4 * k, 4), 1024 * k)))
                for k in range(8)]

    for s in range(NSTEP):
        e.c("---- step %d" % s)
        gaps = [[] for _ in range(8)]
        if s + 1 < NSTEP:
            pk = pack_items(s + 1)
            for g in range(5):
                gaps[g] += pk[g]
        rd = {1: 0, 3: 1, 5: 2, 7: 3}
        if s in BAR:
            def bar(s=s):
                e.wait(v=BAR[s][-1] if e.vtag[BAR[s][-1]] > e.vtag[BAR[s][0]] else BAR[s][0], l="all")
                e.op("s_barrier")
            gaps[3].append(bar)
            gaps[3].append(lambda s=s: aread(s + 2, 0))
            gaps[4].append(lambda s=s: aread(s + 2, 1))
            gaps[5].append(lambda s=s: aread(s + 2, 2))
            gaps[7].append(lambda s=s: aread(s + 2, 3))
        elif s + 2 < NSTEP:
            for g, tau in rd.items():
                gaps[g].insert(0, lambda s=s, tau=tau: aread(s + 2, tau))
        nw = w1count(s)
        avail = 4 * (s + R + 1) - w1next[0]
        avail = min(avail, 4 * (s + R) + 4 - w1next[0])
        nw = max(0, min(nw, 4 * (s + R) - w1next[0] + 0))
        wi = w1_items(nw)
        assert w1next[0] >= min(NSTEP * 4, 4 * (s + 3)), ("W1 lead too small", s, w1next[0])
        di = dma_plan[s] + late.get(s, [])
        flex = []
        a, b = list(wi), list(di)
        while a or b:
            while a:
                it = a.pop(0)
                flex.append(it)
                if it[0] == "v":
                    break
            while b:
                it = b.pop(0)
                flex.append(it)
                if it[0] == "v":
                    break
        base = [len(g) + (1 if k in (1, 3, 5, 7) else 0) + (1 if (s + 2) // 13 == 2 and k in (1, 3, 5, 7) else 0)
                for k, g in enumerate(gaps)]
        free = [max(0, CAP - x) for x in base]
        tot = sum(free)
        g = 0
        n = len(flex)
        acc = 0
        placed = 0
        for k in range(8):
            acc += free[k]
            want = (n * acc + tot - 1) // tot if tot else n
            if k == 7:
                want = n
            while placed < want:
                gaps[k].append(flex[placed][1])
                placed += 1
        if s == NSTEP - 1:
            gaps[3] += [it[1] for it in exw(0)[:4]]
            gaps[4] += [it[1] for it in exw(0)[4:]]
            gaps[5] += [it[1] for it in exw(1)[:4]]
            gaps[6] += [it[1] for it in exw(1)[4:]]
            gaps[7] += [it[1] for it in exw(2)]
        for m in range(8):
            tau, t = m >> 1, m & 1
            if t == 0:
                e.wait(l="a%d_%d" % (s, tau))
            acc_r = ar(AACC + tau * 32 + t * 16, 16)
            e.op("v_mfma_f32_32x32x16_bf16 %s, %s, %s, %s" % (
                acc_r, vr(vPK + (s & 1) * 8 + t * 4, 4), ar(AFR + (s & 1) * 16 + tau * 4, 4), "0" if s == 0 else acc_r))
            for it in gaps[m]:
                it()
    stamp("loop")
    vO = 48
    vX = vRAW
    assert vX + 96 <= top
    e.wait(l="all")
    e.op("s_barrier")
    for p in range(3):
        for k in range(8):
            e.lds("ds_read_b128 %s, v%d offset:%d" % (vr(vX + p * 32 + 4 * k, 4), vEXR, p * 8192 + k * 1024), "x%d_%d" % (p, k))
    for i in range(32):
        e.op("v_accvgpr_read_b32 v%d, a%d" % (vO + i, AACC + 96 + i))
    for p in range(3):
        for k in range(8):
            e.wait(l="x%d_%d" % (p, k))
            for hh in range(2):
                r = 4 * k + 2 * hh
                e.op("v_pk_add_f32 %s, %s, %s" % (vr(vO + r, 2), vr(vO + r, 2), vr(vX + p * 32 + r, 2)))
    for i in range(32):
        e.op("v_cvt_pk_bf16_f32 v%d, 0, v%d" % (vO + i, vO + i))
    for r in range(0, 32, 2):
        e.op("v_pk_add_f32 %s, %s, %s" % (vr(vO + r, 2), vr(vO + r, 2), vr(vB1F + r, 2)))
    for i in range(16):
        e.op("v_cvt_pk_bf16_f32 v%d, v%d, v%d" % (vO + i, vO + i, vO + 16 + i))
    for i in range(16):
        e.op("v_pk_max_i16 v%d, v%d, 0" % (vO + i, vO + i))
    e.wait(v="w2")
    e.op("v_mov_b32 v12, 0")
    for i in range(16):
        a, ee = (i >> 2) & 1, 2 * (i & 3) + (i >> 3)
        e.op("v_dot2_f32_bf16 v12, v%d, v%d, v12" % (vO + i, vW2 + a * 8 + ee))
    e.op("s_nop 2")
    e.op("v_mov_b32 v13, v12")
    e.op("s_nop 1")
    e.op("v_permlane32_swap_b32 v13, v12")
    e.op("v_add_f32 v12, v12, v13")
    e.op("s_cmp_eq_u32 s%d, 0" % sNS)
    e.op("v_min_u32 v12, -2, v12")
    e.op("s_cbranch_scc1 L_final")
    e.vmem("buffer_store_dword v12, v%d, %s, 0 offen sc1" % (vSLOT, srd(S_WS)))
    e.op("s_endpgm")
    e.label("L_final")
    stamp("epi")
    e.op("v_lshrrev_b32 v13, 5, v%d" % vLANE)
    e.op("v_lshl_add_u32 v13, v13, 11, v%d" % vSLOT)
    e.op("s_mov_b32 s%d, 0" % sT3)
    e.wait(v="cnt")
    e.label("L_cnt")
    e.op("v_readfirstlane_b32 s%d, v%d" % (sT0, vCNT))
    e.op("s_cmp_ge_u32 s%d, 8" % sT0)
    e.op("s_cbranch_scc1 L_poll")
    e.op("buffer_load_dword v%d, v11, %s, 0 offen sc1" % (vCNT, srd(S_DBG)))
    e.op("s_add_u32 s%d, s%d, 1" % (sT3, sT3))
    e.op("s_cmp_gt_u32 s%d, %d" % (sT3, o.maxpoll))
    e.op("s_waitcnt vmcnt(0)")
    e.op("s_cbranch_scc0 L_cnt")
    e.label("L_poll")
    for k in range(4):
        e.op("buffer_load_dword v%d, v13, %s, 0 offen offset:%d sc1" % (16 + k, srd(S_WS), 512 * k))
    e.op("s_add_u32 s%d, s%d, 1" % (sT3, sT3))
    e.op("v_and_b32 v14, 1, v%d" % vJ)
    e.op("v_lshlrev_b32 v14, 4, v14")
    for k in range(7):
        e.op("v_alignbit_b32 v%d, v%d, v%d, v14" % (24 + k, vXW + min(k + 1, 6), vXW + k))
    e.op("v_and_b32 v30, 0xffff, v30")
    e.op("s_and_b32 s%d, s%d, 0xffff" % (sWW + 6, sWW + 6))
    e.op("v_mov_b32 v15, 0")
    for k in range(7):
        e.op("v_dot2_f32_bf16 v15, v%d, s%d, v15" % (24 + k, sWW + k))
    e.op("s_lshl_b32 s%d, s%d, 16" % (sT1, sBW))
    e.op("s_lshl_b32 s%d, s%d, 16" % (sT2, sB2))
    e.op("s_nop 1")
    e.op("v_cvt_pk_bf16_f32 v15, 0, v15")
    e.op("v_add_f32 v15, s%d, v15" % sT1)
    e.op("v_cvt_pk_bf16_f32 v15, 0, v15")
    e.op("s_waitcnt vmcnt(0)")
    e.op("s_mov_b32 exec_hi, 0")
    e.op("v_mov_b32 v16, v12")
    e.op("s_mov_b32 exec_hi, -1")
    e.op("v_max_u32 v20, v16, v17")
    e.op("v_max3_u32 v20, v20, v18, v19")
    e.op("s_cmp_gt_u32 s%d, %d" % (sT3, o.maxpoll))
    e.op("v_cmp_eq_u32 vcc, -1, v20")
    e.op("s_cbranch_scc1 L_go")
    e.op("s_cbranch_vccnz L_poll")
    e.label("L_go")
    e.op("v_add_f32 v16, v16, v17")
    e.op("v_add_f32 v18, v18, v19")
    e.op("v_add_f32 v16, v16, v18")
    e.op("v_mov_b32 v17, v16")
    e.op("s_nop 1")
    e.op("v_permlane32_swap_b32 v17, v16")
    e.op("v_add_f32 v16, v16, v17")
    e.op("v_cvt_pk_bf16_f32 v16, 0, v16")
    e.op("v_add_f32 v16, s%d, v16" % sT2)
    e.op("v_cvt_pk_bf16_f32 v16, 0, v16")
    e.op("v_add_f32 v16, v15, v16")
    e.op("v_cvt_pk_bf16_f32 v16, 0, v16")
    e.op("v_mul_f32 v16, 0xbfb8aa3b, v16")
    e.op("v_exp_f32 v16, v16")
    e.op("s_nop 0")
    e.op("v_add_f32 v16, 1.0, v16")
    e.op("v_rcp_f32 v16, v16")
    e.op("s_lshl_b32 s%d, s%d, 2" % (sT1, sMT))
    e.op("s_add_u32 s%d, s%d, s%d" % (sT1, sT1, sW))
    e.op("s_lshl_b32 s%d, s%d, 6" % (sT1, sT1))
    e.op("v_cvt_pk_bf16_f32 v16, v16, v16")
    e.op("v_lshlrev_b32 v17, 1, v%d" % vJ)
    e.op("s_mov_b32 exec_hi, 0")
    e.op("buffer_store_short v16, v17, %s, s%d offen" % (srd(S_OUT), sT1))
    if o.stamp:
        e.op("s_memtime s[%d:%d]" % (sT0 + 1, sT0 + 2))
        e.op("s_waitcnt lgkmcnt(0)")
        e.op("s_cmp_lg_u32 s2, %d" % o.stampwg)
        e.op("s_cbranch_scc1 L_end")
        e.op("s_cmp_lg_u32 s%d, 0" % sW)
        e.op("s_cbranch_scc1 L_end")
        e.op("s_mov_b64 exec, 1")
        e.op("v_mov_b32 v17, 0")
        for k in range(1, len(stamps)):
            e.op("s_sub_u32 s%d, s%d, s%d" % (sT0, sSTAMP + 2 * k, sSTAMP))
            e.op("v_mov_b32 v16, s%d" % sT0)
            e.op("buffer_store_dword v16, v17, %s, 0 offen offset:%d" % (srd(S_DBG), 8 * k - 4))
            e.op("s_nop 1")
        e.op("s_sub_u32 s%d, s%d, s%d" % (sT0, sT0 + 1, sSTAMP))
        e.op("v_mov_b32 v16, s%d" % sT0)
        e.op("buffer_store_dword v16, v17, %s, 0 offen offset:%d" % (srd(S_DBG), 8 * len(stamps) - 4))
        e.op("s_nop 1")
        e.op("v_mov_b32 v16, s%d" % sT3)
        e.op("buffer_store_dword v16, v17, %s, 0 offen offset:%d" % (srd(S_DBG), 8 * len(stamps) + 4))
    e.label("L_end")
    e.op("s_endpgm")

    txt = HEADER + "; @launch grid=(256,1,1) block=(256,1,1) lds=%d\n" % LDS_TOTAL
    txt += '.amdgcn_target "amdgcn-amd-amdhsa--gfx950"\n.text\n.globl %s_kernel\n.p2align 8\n.type %s_kernel,@function\n%s_kernel:\n' % (NAME, NAME, NAME)
    txt += "\n".join(e.L) + "\n"
    txt += """.section .rodata,"a"
.p2align 6
.amdhsa_kernel %s_kernel
  .amdhsa_next_free_vgpr 416
  .amdhsa_next_free_sgpr 102
  .amdhsa_accum_offset 256
  .amdhsa_group_segment_fixed_size 0
  .amdhsa_kernarg_size 96
  .amdhsa_user_sgpr_count 2
  .amdhsa_user_sgpr_kernarg_segment_ptr 1
  .amdhsa_system_sgpr_workgroup_id_x 1
.end_amdhsa_kernel
""" % NAME
    return txt


def main():
    ap = argparse.ArgumentParser()
    ap.add_argument("-o", default="cdna_kernels/%s.s" % NAME)
    ap.add_argument("--ring", type=int, default=12)
    ap.add_argument("--pre1", type=int, default=2)
    ap.add_argument("--pre2", type=int, default=5)
    ap.add_argument("--w1p0", type=int, default=6)
    ap.add_argument("--w1p1", type=int, default=3)
    ap.add_argument("--w1p2", type=int, default=5)
    ap.add_argument("--p1end", type=int, default=21)
    ap.add_argument("--p2end", type=int, default=32)
    ap.add_argument("--pair0", type=int, default=1)
    ap.add_argument("--prefetch", type=int, default=1)
    ap.add_argument("--nsmap", type=int, default=0)
    ap.add_argument("--maxpoll", type=int, default=200000)
    ap.add_argument("--stamp", type=int, default=0)
    ap.add_argument("--stampwg", type=int, default=0)
    o = ap.parse_args()
    open(o.o, "w").write(gen(o))


if __name__ == "__main__":
    main()
```

```python
import sys, argparse

NAME = "standalone__deep_cross_wide_deep__recsys"

HEADER = open("cdna_kernels/%s.s.ref" % NAME).read().split("; @launch")[0]

SLOT = 64512
SPARE = 163840 - 2 * SLOT
S1 = SPARE
S0 = SPARE + SLOT
Q3B = 0
IDXB = 0
EXB = SLOT
LDS_TOTAL = 163840

S_IDX, S_TAB, S_W1, S_XW, S_B1, S_W2, S_OUT, S_DBG, S_WS = 28, 32, 36, 40, 44, 48, 52, 56, 60
sW, sNS, sMT = 64, 65, 66
sW4 = 67
sS1 = 68
sSEL0, sSEL1 = 69, 70
sOFF = 71
sWW = 72
sBW, sB2 = 79, 80
sT0, sT1, sT2, sT3 = 81, 82, 83, 84
sWM, sWO, sWM15, sWO15 = 85, 86, 87, 88
sDO = 89
sHI = 90
sSTAMP = 92

vTID, vLANE, vW1, vTAB, vJ, vSLOT, vEXW, vEXR = 0, 1, 2, 3, 4, 5, 6, 7
vT = 10
vADDR = 16
vPK = 72
vRAW = 88
vPF, vTAB64 = 255, 254
AACC = 0
AFR = 128


def srd(n):
    return "s[%d:%d]" % (n, n + 3)


def vr(n, c=1):
    return "v%d" % n if c == 1 else "v[%d:%d]" % (n, n + c - 1)


def ar(n, c=1):
    return "a%d" % n if c == 1 else "a[%d:%d]" % (n, n + c - 1)


class E:
    def __init__(self):
        self.L = []
        self.vm = 0
        self.lg = 0
        self.vtag = {}
        self.ltag = {}
        self.vdone = 0
        self.ldone = 0
        self.last_m0 = False
        self.inloop = False
        self.x = 0

    def op(self, t):
        if self.inloop and ((self.x & 2 and t.startswith("v_perm")) or (self.x & 16 and t.startswith("v_permlane"))
                            or (self.x & 32 and t.startswith("v_perm_b32"))):
            return
        self.L.append("    " + t)
        self.last_m0 = t.split()[1].startswith("m0") if len(t.split()) > 1 and t.startswith("s_") else False

    def label(self, t):
        self.L.append(t + ":")

    def c(self, t):
        self.L.append("    ; " + t)

    def vmem(self, t, tag=None, count=True):
        if self.inloop and ((self.x & 1 and "dwordx2" in t) or (self.x & 8 and t.endswith("lds"))):
            if tag is not None:
                self.vtag[tag] = self.vm
            return
        if t.endswith("lds") and self.last_m0:
            self.op("s_nop 0")
        self.op(t)
        if count:
            self.vm += 1
            if tag is not None:
                self.vtag[tag] = self.vm

    def lds(self, t, tag=None):
        if self.inloop and self.x & 4 and t.startswith("ds_read"):
            self.ltag[tag] = self.lg
            return
        self.op(t)
        self.lg += 1
        if tag is not None:
            self.ltag[tag] = self.lg

    def wait(self, v=None, l=None):
        parts = []
        if v is not None:
            idx = self.vm if v == "all" else self.vtag[v]
            if idx > self.vdone:
                n = min(self.vm - idx, 63)
                parts.append("vmcnt(%d)" % n)
                self.vdone = self.vm - n
        if l is not None:
            idx = self.lg if l == "all" else self.ltag[l]
            if idx > self.ldone:
                n = min(self.lg - idx, 15)
                parts.append("lgkmcnt(%d)" % n)
                self.ldone = self.lg - n
        if parts:
            self.op("s_waitcnt " + " ".join(parts))
            return True
        return False


NSTEP = 52


def gen(o):
    e = E()
    R = o.ring
    assert vRAW + 8 * R <= 256
    vB1F = 16
    vB1R = 48
    stamps = []
    SPAIRS = [92, 96, 98, 100, 4, 6, 8, 14, 16, 18, 22, 24, 26, 86]

    def stamp(name):
        if not o.stamp:
            return
        k = len(stamps)
        stamps.append(name)
        e.op("s_memtime s[%d:%d]" % (SPAIRS[k], SPAIRS[k] + 1))

    def stamp_out():
        if not o.stamp:
            return
        e.op("s_memtime s[88:89]")
        e.op("s_memrealtime s[68:69]")
        e.op("s_waitcnt lgkmcnt(0)")
        e.op("s_mov_b64 exec, -1")
        if o.stamp == 2:
            lab = "L_so%d" % len(e.L)
            e.op("s_lshl_b32 s70, s2, 2")
            e.op("s_add_u32 s70, s70, s%d" % sW)
            e.op("s_cmp_lg_u32 s70, %d" % (o.stampwg * 4))
            e.op("s_cbranch_scc1 " + lab)
            e.op("v_mov_b32 v16, 0")
            sel = [2, 4, 5, 11, 13]
            for k, i in enumerate(sel):
                e.op("s_sub_u32 s70, s%d, s%d" % (SPAIRS[i], SPAIRS[0]))
                e.op("v_writelane_b32 v16, s70, %d" % k)
            e.op("s_sub_u32 s70, s88, s%d" % SPAIRS[0])
            e.op("v_writelane_b32 v16, s70, 5")
            e.op("s_sub_u32 s70, s68, s94")
            e.op("v_writelane_b32 v16, s70, 6")
            e.op("v_writelane_b32 v16, s%d, 7" % sT3)
            e.op("v_lshlrev_b32 v17, 3, v%d" % vLANE)
            e.op("s_mov_b64 exec, 0xff")
            e.op("buffer_store_dword v16, v17, %s, 0 offen offset:4" % srd(S_DBG))
            e.label(lab)
            return
        e.op("v_mov_b32 v16, 0")
        for k in range(len(stamps)):
            e.op("v_writelane_b32 v16, s%d, %d" % (SPAIRS[k], k))
        e.op("v_writelane_b32 v16, s88, 16")
        e.op("v_writelane_b32 v16, s94, 17")
        e.op("v_writelane_b32 v16, s68, 18")
        e.op("v_writelane_b32 v16, s%d, 19" % sT3)
        e.op("s_getreg_b32 s70, hwreg(HW_REG_XCC_ID)")
        e.op("v_writelane_b32 v16, s70, 20")
        e.op("s_getreg_b32 s70, hwreg(HW_REG_HW_ID)")
        e.op("v_writelane_b32 v16, s70, 21")
        e.op("s_lshl_b32 s70, s2, 2")
        e.op("s_add_u32 s70, s70, s%d" % sW)
        e.op("s_lshl_b32 s70, s70, 7")
        e.op("s_add_u32 s70, s70, 0x40000")
        e.op("v_lshlrev_b32 v17, 2, v%d" % vLANE)
        e.op("s_mov_b32 exec_hi, 0")
        e.op("buffer_store_dword v16, v17, %s, s70 offen" % srd(S_WS))

    e.op("s_cmp_ge_u32 s2, 256")
    e.op("s_cbranch_scc1 L_end")
    e.op("s_load_dwordx16 s[4:19], s[0:1], 0")
    e.op("s_load_dwordx8 s[20:27], s[0:1], 64")
    stamp("start")
    if o.stamp:
        e.op("s_memrealtime s[94:95]")
    e.op("v_lshrrev_b32 v10, 6, v0")
    e.op("v_and_b32 v%d, 63, v0" % vLANE)
    e.op("v_readfirstlane_b32 s%d, v10" % sW)
    if o.nsmap == 0:
        e.op("s_and_b32 s%d, s2, 7" % sNS)
        e.op("s_lshr_b32 s%d, s2, 3" % sMT)
    else:
        e.op("s_lshr_b32 s%d, s2, 5" % sNS)
        e.op("s_and_b32 s%d, s2, 31" % sMT)
    e.op("v_and_b32 v%d, 31, v0" % vJ)
    e.op("s_mov_b32 s%d, %d" % (sS1, S1))
    e.op("s_mov_b32 s%d, 0x05040100" % sSEL0)
    e.op("s_mov_b32 s%d, 0x07060302" % sSEL1)
    e.op("s_mov_b32 s%d, 0xffff0000" % sHI)
    e.op("s_lshl_b32 s%d, s%d, 2" % (sW4, sW))
    e.op("s_lshl_b32 s%d, s%d, 10" % (sWM, sW))
    e.op("s_lshl_b32 s%d, s%d, 12" % (sWO, sW))
    e.op("s_min_u32 s%d, s%d, 2" % (sT0, sW))
    e.op("s_lshl_b32 s%d, s%d, 10" % (sWM15, sT0))
    e.op("s_lshl_b32 s%d, s%d, 12" % (sWO15, sT0))
    e.op("s_mul_i32 s%d, s%d, 13312" % (sT0, sMT))
    e.op("s_add_u32 s%d, s%d, s%d" % (sT0, sT0, sWO))
    e.op("v_lshlrev_b32 v11, 4, v%d" % vLANE)
    e.op("v_add_u32 v11, s%d, v11" % sT0)
    e.op("s_lshl_b32 s%d, s%d, 3" % (sT1, sMT))
    e.op("s_add_u32 s%d, s%d, s%d" % (sT1, sT1, sNS))
    e.op("s_lshl_b32 s%d, s%d, 9" % (sT1, sT1))
    e.op("s_lshl_b32 s%d, s%d, 7" % (sT2, sW))
    e.op("s_add_u32 s%d, s%d, s%d" % (sT1, sT1, sT2))
    e.op("v_lshlrev_b32 v%d, 2, v%d" % (vSLOT, vJ))
    e.op("v_add_u32 v%d, s%d, v%d" % (vSLOT, sT1, vSLOT))
    e.op("v_mov_b32 v12, -1")
    e.op("v_lshrrev_b32 v13, 4, v%d" % vLANE)
    e.op("v_sub_u32 v13, v%d, v13" % vLANE)
    e.op("v_and_b32 v13, 3, v13")
    e.op("v_lshlrev_b32 v13, 4, v13")
    e.op("v_lshrrev_b32 v14, 2, v%d" % vLANE)
    e.op("v_lshl_add_u32 v%d, v14, 8, v13" % vTAB)
    e.op("v_add_u32 v%d, 64, v%d" % (vTAB64, vTAB))
    e.op("v_lshrrev_b32 v13, 5, v%d" % vLANE)
    e.op("s_mov_b32 s%d, %d" % (sT2, 13 * 128 * 1024))
    e.op("v_mul_lo_u32 v13, v13, s%d" % sT2)
    e.op("v_bfe_u32 v14, v%d, 4, 1" % vLANE)
    e.op("v_lshl_add_u32 v13, v14, 12, v13")
    e.op("v_and_b32 v14, 15, v%d" % vLANE)
    e.op("v_lshl_add_u32 v13, v14, 3, v13")
    e.op("s_lshl_b32 s%d, s%d, 13" % (sT2, sW))
    e.op("s_lshl_b32 s%d, s%d, 7" % (sT3, sNS))
    e.op("s_add_u32 s%d, s%d, s%d" % (sT2, sT2, sT3))
    e.op("v_add_u32 v%d, s%d, v13" % (vW1, sT2))
    e.op("s_lshl_b32 s%d, s%d, 2" % (sT2, sMT))
    e.op("s_add_u32 s%d, s%d, s%d" % (sT2, sT2, sW))
    e.op("s_mul_i32 s%d, s%d, 26" % (sT0, sT2))
    e.op("v_min_u32 v13, 25, v%d" % vLANE)
    e.op("v_add_u32 v13, s%d, v13" % sT0)
    e.op("v_lshlrev_b32 v13, 10, v13")
    e.op("v_add_u32 v13, s%d, v13" % sT3)
    e.op("s_lshl_b32 s%d, s%d, 11" % (sT0, sT2))
    e.op("v_lshlrev_b32 v14, 7, v14")
    e.op("v_add_u32 v14, s%d, v14" % sT0)
    e.op("s_waitcnt lgkmcnt(0)")
    stamp("karg")
    for (sd, sp, nb) in [(S_WS, 26, 0x100000), (S_IDX, 4, 4096 * 104), (S_TAB, 6, 256000), (S_W1, 14, 3328 * 1024)]:
        e.op("s_mov_b32 s%d, s%d" % (sd, sp))
        e.op("s_mov_b32 s%d, s%d" % (sd + 1, sp + 1))
        e.op("s_mov_b32 s%d, %d" % (sd + 2, nb))
        e.op("s_mov_b32 s%d, 0x00020000" % (sd + 3))
    e.op("s_add_u32 m0, s%d, %d" % (sWO, IDXB))
    e.vmem("buffer_store_dword v12, v%d, %s, 0 offen sc1" % (vSLOT, srd(S_WS)), "marker")
    for k in range(4):
        e.vmem("buffer_load_dwordx4 v11, %s, 0 offen offset:%d lds" % (srd(S_IDX), 1024 * k), "idx%d" % k)
    if o.prefetch:
        e.vmem("buffer_load_dword v%d, v13, %s, 0 offen" % (vPF, srd(S_W1)))
        e.vmem("buffer_load_dword v%d, v14, %s, 0 offen" % (vPF, srd(S_TAB)))
    e.op("s_load_dwordx4 s[%d:%d], s[10:11], 0" % (sWW, sWW + 3))
    e.op("s_load_dwordx2 s[%d:%d], s[10:11], 16" % (sWW + 4, sWW + 5))
    e.op("s_load_dword s%d, s[10:11], 24" % (sWW + 6))
    e.op("s_load_dword s%d, s[12:13], 0" % sBW)
    e.op("s_load_dword s%d, s[20:21], 0" % sB2)

    w1next = [0]
    cur_soff = [None]

    def w1_items(n):
        items = []
        for _ in range(n):
            k = w1next[0]
            if k >= NSTEP * 4:
                break
            w1next[0] += 1
            s, r = divmod(k, 4)
            q, f = divmod(s, 13)
            so = f * 131072 + q * 32768
            if cur_soff[0] != so:
                cur_soff[0] = so
                items.append(("s", lambda so=so: e.op("s_mov_b32 s%d, %d" % (sOFF, so))))
            dst = vRAW + (s % R) * 8 + r * 2
            items.append(("v", lambda dst=dst, r=r, s=s: e.vmem(
                "buffer_load_dwordx2 %s, v%d, %s, s%d offen offset:%d" % (vr(dst, 2), vW1, srd(S_W1), sOFF, r * 1024),
                "w1_%d_%d" % (s, r)), s))
        return items

    def run(items):
        for it in items:
            it[1]()

    run(w1_items(4 * o.pre1))
    e.op("s_lshl_b32 s%d, s%d, 2" % (sT0, sMT))
    e.op("s_add_u32 s%d, s%d, s%d" % (sT0, sT0, sW))
    e.op("s_and_b32 s%d, s%d, 63" % (sT0, sT0))

    def rot_dma(first, second):
        for i in range(16):
            if i:
                e.op("s_add_u32 s%d, s%d, 4" % (sT0, sT0))
                e.op("s_and_b32 s%d, s%d, 63" % (sT0, sT0))
            e.op("s_min_u32 s%d, s%d, 62" % (sT1, sT0))
            e.op("s_lshl_b32 s%d, s%d, 10" % (sT2, sT1))
            (lb, qo, tg) = first
            e.op("s_add_u32 m0, s%d, %d" % (sT2, lb))
            e.op("s_lshl_b32 s%d, s%d, 12" % (sDO, sT1))
            e.vmem("buffer_load_dwordx4 v%d, %s, s%d offen lds" % (vTAB64 if qo else vTAB, srd(S_TAB), sDO), tg)
            if second:
                (lb, qo, tg) = second
                e.op("s_add_u32 m0, s%d, %d" % (sT2, lb))
                e.vmem("buffer_load_dwordx4 v%d, %s, s%d offen lds" % (vTAB64 if qo else vTAB, srd(S_TAB), sDO), tg)
        e.op("s_add_u32 s%d, s%d, 4" % (sT0, sT0))
        e.op("s_and_b32 s%d, s%d, 63" % (sT0, sT0))

    if o.pair0:
        rot_dma((S0, 0, "q0"), (S1, 64, "q1"))
    else:
        rot_dma((S0, 0, "q0"), None)
    for (sd, sp, nb) in [(S_XW, 8, 4096 * 26), (S_B1, 16, 1024), (S_W2, 18, 1024), (S_OUT, 22, 8192), (S_DBG, 24, 256)]:
        e.op("s_mov_b32 s%d, s%d" % (sd, sp))
        e.op("s_mov_b32 s%d, s%d" % (sd + 1, sp + 1))
        e.op("s_mov_b32 s%d, %d" % (sd + 2, nb))
        e.op("s_mov_b32 s%d, 0x00020000" % (sd + 3))
    e.op("v_lshrrev_b32 v13, 5, v%d" % vLANE)
    e.op("v_lshl_add_u32 v13, v%d, 1, v13" % vJ)
    e.op("v_mul_u32_u24 v13, 52, v13")
    e.op("v_lshlrev_b32 v14, 4, v%d" % vLANE)
    EXW = [6, 8, 9]
    IDXA = [10, 11, 12, 13]
    for tau in range(4):
        e.op("s_add_u32 s%d, s%d, %d" % (sT1, sW, 1 + tau))
        e.op("s_and_b32 s%d, s%d, 3" % (sT1, sT1))
        e.op("s_mul_i32 s%d, s%d, 3328" % (sT2, sT1))
        e.op("s_mul_i32 s%d, s%d, 24576" % (sT3, sT1))
        e.op("s_add_u32 s%d, s%d, %d" % (sT3, sT3, EXB + (tau * 8192 if tau < 3 else 0)))
        if tau < 3:
            e.op("v_add_u32 v%d, s%d, v14" % (EXW[tau], sT3))
        else:
            e.op("v_add_u32 v%d, s%d, v14" % (vEXR, sT3))
        e.op("v_add_u32 v%d, s%d, v13" % (IDXA[tau], sT2))
    e.wait(v="idx3")
    e.op("s_barrier")
    stamp("idx")
    if not o.pair0:
        rot_dma((S1, 64, "q1"), None)
    run(w1_items(4 * (o.pre2 - o.pre1)))
    e.op("s_cmp_lg_u32 s%d, 0" % sW)
    e.op("s_cbranch_scc1 L_nosig")
    e.op("s_lshl_b32 s%d, s%d, 3" % (sT1, sMT))
    e.op("v_mov_b32 v14, s%d" % sT1)
    e.op("v_mov_b32 v15, 1")
    e.op("s_mov_b64 exec, 1")
    e.vmem("buffer_atomic_add v15, v14, %s, 0 offen sc1" % srd(S_DBG), count=False)
    e.op("s_mov_b64 exec, -1")
    e.label("L_nosig")
    e.op("s_waitcnt lgkmcnt(0)")
    for tau in range(4):
        for p in range(7):
            e.lds("ds_read2_b32 %s, v%d offset0:%d offset1:%d" % (vr(vADDR + tau * 14 + 2 * p, 2), IDXA[tau], 2 * p, 2 * p + 1),
                  "ix%d_%d" % (tau, p))
    for p in range(7):
        for tau in range(4):
            e.wait(l="ix%d_%d" % (tau, p))
            for f in (2 * p, 2 * p + 1):
                if f >= 13:
                    continue
                a = vADDR + tau * 14 + f
                t = vADDR + tau * 14 + 13 if p < 6 else 14
                t = 14 + (f & 1)
                e.op("v_add_lshl_u32 v%d, v%d, s%d, 2" % (t, a, sW4))
                e.op("v_and_or_b32 v%d, v%d, 48, s%d" % (t, t, sS1))
                e.op("v_lshl_add_u32 v%d, v%d, 6, v%d" % (a, a, t))

    def pack_items(s):
        b = vRAW + (s % R) * 8
        pk = vPK + (s & 1) * 8
        X = [b + 0, b + 2, b + 4, b + 6, b + 1, b + 3, b + 5, b + 7]

        def sw(r):
            return lambda: e.op("v_permlane16_swap_b32 v%d, v%d" % (b + 2 * r, b + 2 * r + 1))

        def pm(p, t):
            return lambda: e.op("v_perm_b32 v%d, v%d, v%d, s%d" % (pk + t * 4 + p, X[2 * p + 1], X[2 * p], sSEL1 if t else sSEL0))
        w = lambda: e.wait(v="w1_%d_3" % s)
        return [[w, sw(0), sw(1)], [pm(0, 0), pm(0, 1)], [pm(2, 0), pm(2, 1), sw(2), sw(3)], [pm(1, 0), pm(1, 1)],
                [pm(3, 0), pm(3, 1)]]

    def aread(s, tau):
        q, f = divmod(s, 13)
        off = {0: SLOT, 1: 0, 2: SLOT, 3: 0}[q]
        a = vADDR + tau * 14 + f
        e.lds("ds_read_b128 %s, v%d offset:%d" % (ar(AFR + (s & 1) * 16 + tau * 4, 4), a, off), "a%d_%d" % (s, tau))
        if q == 2:
            e.op("v_subrev_u32 v%d, s%d, v%d" % (a, sS1, a))

    for g in pack_items(0):
        for it in g:
            it()
    stamp("xform")
    e.wait(v="q1" if o.pair0 else "q0")
    e.op("s_barrier")
    stamp("q0")
    for s in (0, 1):
        for tau in range(4):
            aread(s, tau)

    def dma_items(i, lb, qo, tag):
        m, oo = (sWM15, sWO15) if i == 15 else (sWM, sWO)
        return [("s", lambda: e.op("s_add_u32 m0, s%d, %d" % (m, lb + i * 4096))),
                ("s", lambda: e.op("s_add_u32 s%d, s%d, %d" % (sDO, oo, i * 16384 + (qo & 128)))),
                ("v", lambda: e.vmem("buffer_load_dwordx4 v%d, %s, s%d offen lds" % (vTAB64 if qo & 64 else vTAB, srd(S_TAB), sDO), tag))]

    def dma_second(i, lb, qo, tag):
        return [("s", lambda: e.op("s_add_u32 m0, s%d, %d" % (sWM, lb + i * 4096))),
                ("v", lambda: e.vmem("buffer_load_dwordx4 v%d, %s, s%d offen lds" % (vTAB64 if qo & 64 else vTAB, srd(S_TAB), sDO), tag))]

    dma_plan = {s: [] for s in range(NSTEP)}
    units = []
    for i in range(8):
        units.append(dma_items(i, S0, 128, "q2") + dma_second(i, Q3B, 192, "q3a"))
        units.append(dma_items(8 + i, S0, 128, "q2"))
    st = list(range(12, o.p1end + 1))
    for k, u in enumerate(units):
        dma_plan[st[k * len(st) // len(units)]] += u
    st = list(range(25, o.p2end + 1))
    for k in range(8):
        dma_plan[st[k * len(st) // 8]] += dma_items(8 + k, Q3B, 192, "q3b")

    def w1count(s):
        if s < 11:
            return o.w1p0
        if s <= o.p1end:
            return o.w1p1
        return o.w1p2

    vW2 = vRAW + 0
    CAP = 5
    BAR = {11: ("q1",), 24: ("q2", "q3a"), 37: ("q3b",)}
    late = {}

    top = max(vRAW + 8 * R, vRAW + 96)
    assert top + 16 + 16 + 8 + 2 <= 254, "no room for late operands"
    vB1R = top
    vW2 = top + 16
    vXW = top + 32
    vCNT = top + 40
    vLA = top + 41

    def late_items():
        it = []
        it.append(("s", lambda: e.op("v_lshrrev_b32 v%d, 5, v%d" % (vLA, vLANE))))
        it.append(("s", lambda: e.op("v_lshlrev_b32 v%d, 5, v%d" % (vLA, vLA))))
        it.append(("s", lambda: e.op("s_lshl_b32 s%d, s%d, 7" % (sT0, sNS))))
        for k, off in enumerate((0, 16, 64, 80)):
            it.append(("v", lambda k=k, off=off: e.vmem("buffer_load_dwordx4 %s, v%d, %s, s%d offen offset:%d" % (
                vr(vB1R + 4 * k, 4), vLA, srd(S_B1), sT0, off), "b1")))
        for k, off in enumerate((0, 16, 64, 80)):
            it.append(("v", lambda k=k, off=off: e.vmem("buffer_load_dwordx4 %s, v%d, %s, s%d offen offset:%d" % (
                vr(vW2 + 4 * k, 4), vLA, srd(S_W2), sT0, off), "w2")))
        it.append(("s", lambda: e.op("s_lshl_b32 s%d, s%d, 2" % (sT1, sMT))))
        it.append(("s", lambda: e.op("s_add_u32 s%d, s%d, s%d" % (sT1, sT1, sW))))
        it.append(("s", lambda: e.op("s_mul_i32 s%d, s%d, %d" % (sT1, sT1, 32 * 26))))
        it.append(("s", lambda: e.op("v_mul_u32_u24 v10, 26, v%d" % vJ)))
        it.append(("s", lambda: e.op("v_and_b32 v10, -4, v10")))
        it.append(("v", lambda: e.vmem("buffer_load_dwordx4 %s, v10, %s, s%d offen" % (vr(vXW, 4), srd(S_XW), sT1), "xw0")))
        it.append(("v", lambda: e.vmem("buffer_load_dwordx3 %s, v10, %s, s%d offen offset:16" % (vr(vXW + 4, 3), srd(S_XW), sT1), "xw")))
        it.append(("s", lambda: e.op("s_lshl_b32 s%d, s%d, 3" % (sT2, sMT))))
        it.append(("s", lambda: e.op("v_mov_b32 v11, s%d" % sT2)))
        it.append(("v", lambda: e.vmem("buffer_load_dword v%d, v11, %s, 0 offen sc1" % (vCNT, srd(S_DBG)), "cnt")))
        return it

    LATE = late_items()
    late_steps = [44, 45, 46, 47]
    for k, s in enumerate(late_steps):
        late[s] = LATE[k * len(LATE) // len(late_steps):(k + 1) * len(LATE) // len(late_steps)]

    def b1_items():
        it = [("s", lambda: e.wait(v="b1"))]
        for i in range(16):
            a, ee = (i >> 2) & 1, 2 * (i & 3) + (i >> 3)
            src = vB1R + a * 8 + ee
            it.append(("s", lambda i=i, src=src: e.op("v_lshlrev_b32 v%d, 16, v%d" % (vB1F + i, src))))
            it.append(("s", lambda i=i, src=src: e.op("v_and_b32 v%d, s%d, v%d" % (vB1F + 16 + i, sHI, src))))
        return it
    B1I = b1_items()
    late[50] = B1I[:21]
    late[51] = B1I[21:]

    def exw(tau):
        return [("v", lambda k=k: e.lds("ds_write_b128 v%d, %s offset:%d" % (EXW[tau], ar(AACC + tau * 32 + 4 * k, 4), 1024 * k)))
                for k in range(8)]

    e.inloop = True
    e.x = o.x
    for s in range(NSTEP):
        e.c("---- step %d" % s)
        gaps = [[] for _ in range(8)]
        if s + 1 < NSTEP:
            pk = pack_items(s + 1)
            for g in range(5):
                gaps[g] += pk[g]
        rd = {1: 0, 3: 1, 5: 2, 7: 3}
        if s in BAR:
            def bar(s=s):
                stamp("pre%d" % s)
                e.wait(v=BAR[s][-1] if e.vtag[BAR[s][-1]] > e.vtag[BAR[s][0]] else BAR[s][0], l="all")
                e.op("s_barrier")
                stamp("post%d" % s)
            gaps[3].append(bar)
            gaps[3].append(lambda s=s: aread(s + 2, 0))
            gaps[4].append(lambda s=s: aread(s + 2, 1))
            gaps[5].append(lambda s=s: aread(s + 2, 2))
            gaps[7].append(lambda s=s: aread(s + 2, 3))
        elif s + 2 < NSTEP:
            for g, tau in rd.items():
                gaps[g].insert(0, lambda s=s, tau=tau: aread(s + 2, tau))
        nw = w1count(s)
        avail = 4 * (s + R + 1) - w1next[0]
        avail = min(avail, 4 * (s + R) + 4 - w1next[0])
        nw = max(0, min(nw, 4 * (s + R) - w1next[0] + 0))
        wi = w1_items(nw)
        assert w1next[0] >= min(NSTEP * 4, 4 * (s + 3)), ("W1 lead too small", s, w1next[0])
        di = dma_plan[s] + late.get(s, [])
        flex = []
        a, b = list(wi), list(di)
        while a or b:
            while a:
                it = a.pop(0)
                flex.append(it)
                if it[0] == "v":
                    break
            while b:
                it = b.pop(0)
                flex.append(it)
                if it[0] == "v":
                    break
        base = [len(g) + (1 if k in (1, 3, 5, 7) else 0) + (1 if (s + 2) // 13 == 2 and k in (1, 3, 5, 7) else 0)
                for k, g in enumerate(gaps)]
        free = [max(0, CAP - x) for x in base]
        tot = sum(free)
        g = 0
        n = len(flex)
        acc = 0
        placed = 0
        for k in range(8):
            acc += free[k]
            want = (n * acc + tot - 1) // tot if tot else n
            if k == 7:
                want = n
            while placed < want:
                gaps[k].append(flex[placed][1])
                placed += 1
        if s == NSTEP - 1:
            gaps[3] += [it[1] for it in exw(0)[:4]]
            gaps[4] += [it[1] for it in exw(0)[4:]]
            gaps[5] += [it[1] for it in exw(1)[:4]]
            gaps[6] += [it[1] for it in exw(1)[4:]]
            gaps[7] += [it[1] for it in exw(2)]
        for m in range(8):
            tau, t = m >> 1, m & 1
            if t == 0:
                e.wait(l="a%d_%d" % (s, tau))
            acc_r = ar(AACC + tau * 32 + t * 16, 16)
            e.op("v_mfma_f32_32x32x16_bf16 %s, %s, %s, %s" % (
                acc_r, vr(vPK + (s & 1) * 8 + t * 4, 4), ar(AFR + (s & 1) * 16 + tau * 4, 4), "0" if s == 0 else acc_r))
            for it in gaps[m]:
                it()
    e.inloop = False
    stamp("loop")
    vO = 48
    vX = vRAW
    assert vX + 96 <= top
    e.wait(l="all")
    e.op("s_barrier")
    stamp("exbar")
    for p in range(3):
        for k in range(8):
            e.lds("ds_read_b128 %s, v%d offset:%d" % (vr(vX + p * 32 + 4 * k, 4), vEXR, p * 8192 + k * 1024), "x%d_%d" % (p, k))
    for i in range(32):
        e.op("v_accvgpr_read_b32 v%d, a%d" % (vO + i, AACC + 96 + i))
    for p in range(3):
        for k in range(8):
            e.wait(l="x%d_%d" % (p, k))
            for hh in range(2):
                r = 4 * k + 2 * hh
                e.op("v_pk_add_f32 %s, %s, %s" % (vr(vO + r, 2), vr(vO + r, 2), vr(vX + p * 32 + r, 2)))
    for i in range(32):
        e.op("v_cvt_pk_bf16_f32 v%d, 0, v%d" % (vO + i, vO + i))
    for r in range(0, 32, 2):
        e.op("v_pk_add_f32 %s, %s, %s" % (vr(vO + r, 2), vr(vO + r, 2), vr(vB1F + r, 2)))
    for i in range(16):
        e.op("v_cvt_pk_bf16_f32 v%d, v%d, v%d" % (vO + i, vO + i, vO + 16 + i))
    for i in range(16):
        e.op("v_pk_max_i16 v%d, v%d, 0" % (vO + i, vO + i))
    e.wait(v="w2")
    e.op("v_mov_b32 v12, 0")
    for i in range(16):
        a, ee = (i >> 2) & 1, 2 * (i & 3) + (i >> 3)
        e.op("v_dot2_f32_bf16 v12, v%d, v%d, v12" % (vO + i, vW2 + a * 8 + ee))
    e.op("s_nop 2")
    e.op("v_mov_b32 v13, v12")
    e.op("s_nop 1")
    e.op("v_permlane32_swap_b32 v13, v12")
    e.op("v_add_f32 v12, v12, v13")
    stamp("epi")
    e.op("s_cmp_eq_u32 s%d, 0" % sNS)
    e.op("v_min_u32 v12, -2, v12")
    e.op("s_cbranch_scc1 L_final")
    e.vmem("buffer_store_dword v12, v%d, %s, 0 offen sc1" % (vSLOT, srd(S_WS)))
    stamp_out()
    e.op("s_endpgm")
    e.label("L_final")
    e.op("v_lshrrev_b32 v13, 5, v%d" % vLANE)
    e.op("v_lshl_add_u32 v13, v13, 11, v%d" % vSLOT)
    e.op("s_mov_b32 s%d, 0" % sT3)
    e.wait(v="cnt")
    e.label("L_cnt")
    e.op("v_readfirstlane_b32 s%d, v%d" % (sT0, vCNT))
    e.op("s_cmp_ge_u32 s%d, 8" % sT0)
    e.op("s_cbranch_scc1 L_poll")
    e.op("buffer_load_dword v%d, v11, %s, 0 offen sc1" % (vCNT, srd(S_DBG)))
    e.op("s_add_u32 s%d, s%d, 1" % (sT3, sT3))
    e.op("s_cmp_gt_u32 s%d, %d" % (sT3, o.maxpoll))
    e.op("s_waitcnt vmcnt(0)")
    e.op("s_cbranch_scc0 L_cnt")
    e.label("L_poll")
    for k in range(4):
        e.op("buffer_load_dword v%d, v13, %s, 0 offen offset:%d sc1" % (16 + k, srd(S_WS), 512 * k))
    e.op("s_add_u32 s%d, s%d, 1" % (sT3, sT3))
    e.op("v_and_b32 v14, 1, v%d" % vJ)
    e.op("v_lshlrev_b32 v14, 4, v14")
    for k in range(7):
        e.op("v_alignbit_b32 v%d, v%d, v%d, v14" % (24 + k, vXW + min(k + 1, 6), vXW + k))
    e.op("v_and_b32 v30, 0xffff, v30")
    e.op("s_and_b32 s%d, s%d, 0xffff" % (sWW + 6, sWW + 6))
    e.op("v_mov_b32 v15, 0")
    for k in range(7):
        e.op("v_dot2_f32_bf16 v15, v%d, s%d, v15" % (24 + k, sWW + k))
    e.op("s_lshl_b32 s%d, s%d, 16" % (sT1, sBW))
    e.op("s_lshl_b32 s%d, s%d, 16" % (sT2, sB2))
    e.op("s_nop 1")
    e.op("v_cvt_pk_bf16_f32 v15, 0, v15")
    e.op("v_add_f32 v15, s%d, v15" % sT1)
    e.op("v_cvt_pk_bf16_f32 v15, 0, v15")
    e.op("s_waitcnt vmcnt(0)")
    e.op("s_mov_b32 exec_hi, 0")
    e.op("v_mov_b32 v16, v12")
    e.op("s_mov_b32 exec_hi, -1")
    e.op("v_max_u32 v20, v16, v17")
    e.op("v_max3_u32 v20, v20, v18, v19")
    e.op("s_cmp_gt_u32 s%d, %d" % (sT3, o.maxpoll))
    e.op("v_cmp_eq_u32 vcc, -1, v20")
    e.op("s_cbranch_scc1 L_go")
    e.op("s_cbranch_vccnz L_poll")
    e.label("L_go")
    e.op("v_add_f32 v16, v16, v17")
    e.op("v_add_f32 v18, v18, v19")
    e.op("v_add_f32 v16, v16, v18")
    e.op("v_mov_b32 v17, v16")
    e.op("s_nop 1")
    e.op("v_permlane32_swap_b32 v17, v16")
    e.op("v_add_f32 v16, v16, v17")
    e.op("v_cvt_pk_bf16_f32 v16, 0, v16")
    e.op("v_add_f32 v16, s%d, v16" % sT2)
    e.op("v_cvt_pk_bf16_f32 v16, 0, v16")
    e.op("v_add_f32 v16, v15, v16")
    e.op("v_cvt_pk_bf16_f32 v16, 0, v16")
    e.op("v_mul_f32 v16, 0xbfb8aa3b, v16")
    e.op("v_exp_f32 v16, v16")
    e.op("s_nop 0")
    e.op("v_add_f32 v16, 1.0, v16")
    e.op("v_rcp_f32 v16, v16")
    e.op("s_lshl_b32 s%d, s%d, 2" % (sT1, sMT))
    e.op("s_add_u32 s%d, s%d, s%d" % (sT1, sT1, sW))
    e.op("s_lshl_b32 s%d, s%d, 6" % (sT1, sT1))
    e.op("v_cvt_pk_bf16_f32 v16, v16, v16")
    e.op("v_lshlrev_b32 v17, 1, v%d" % vJ)
    e.op("s_mov_b32 exec_hi, 0")
    e.op("buffer_store_short v16, v17, %s, s%d offen" % (srd(S_OUT), sT1))
    stamp_out()
    if o.stamp:
        print('stamps:', stamps)
    e.label("L_end")
    e.op("s_endpgm")

    txt = HEADER + "; @launch grid=(256,1,1) block=(256,1,1) lds=%d\n" % LDS_TOTAL
    txt += '.amdgcn_target "amdgcn-amd-amdhsa--gfx950"\n.text\n.globl %s_kernel\n.p2align 8\n.type %s_kernel,@function\n%s_kernel:\n' % (NAME, NAME, NAME)
    txt += "\n".join(e.L) + "\n"
    txt += """.section .rodata,"a"
.p2align 6
.amdhsa_kernel %s_kernel
  .amdhsa_next_free_vgpr 416
  .amdhsa_next_free_sgpr 102
  .amdhsa_accum_offset 256
  .amdhsa_group_segment_fixed_size 0
  .amdhsa_kernarg_size 96
  .amdhsa_user_sgpr_count 2
  .amdhsa_user_sgpr_kernarg_segment_ptr 1
  .amdhsa_system_sgpr_workgroup_id_x 1
.end_amdhsa_kernel
""" % NAME
    return txt


def main():
    ap = argparse.ArgumentParser()
    ap.add_argument("-o", default="cdna_kernels/%s.s" % NAME)
    ap.add_argument("--ring", type=int, default=12)
    ap.add_argument("--pre1", type=int, default=2)
    ap.add_argument("--pre2", type=int, default=5)
    ap.add_argument("--w1p0", type=int, default=6)
    ap.add_argument("--w1p1", type=int, default=3)
    ap.add_argument("--w1p2", type=int, default=5)
    ap.add_argument("--p1end", type=int, default=21)
    ap.add_argument("--p2end", type=int, default=32)
    ap.add_argument("--pair0", type=int, default=1)
    ap.add_argument("--prefetch", type=int, default=1)
    ap.add_argument("--nsmap", type=int, default=0)
    ap.add_argument("--maxpoll", type=int, default=200000)
    ap.add_argument("--x", type=int, default=0)
    ap.add_argument("--stamp", type=int, default=0)
    ap.add_argument("--stampwg", type=int, default=0)
    o = ap.parse_args()
    open(o.o, "w").write(gen(o))


if __name__ == "__main__":
    main()
```

```python
import sys, argparse

NAME = "standalone__deep_cross_wide_deep__recsys"

HEADER = open("cdna_kernels/%s.s.ref" % NAME).read().split("; @launch")[0]

SLOT = 64512
SPARE = 163840 - 2 * SLOT
S1 = SPARE
S0 = SPARE + SLOT
Q3B = 0
IDXB = 0
EXB = SLOT
LDS_TOTAL = 163840

S_IDX, S_TAB, S_W1, S_XW, S_B1, S_W2, S_OUT, S_DBG, S_WS = 28, 32, 36, 40, 44, 48, 52, 56, 60
sW, sNS, sMT = 64, 65, 66
sW4 = 67
sS1 = 68
sSEL0, sSEL1 = 69, 70
sOFF = 71
sWW = 72
sBW, sB2 = 79, 80
sT0, sT1, sT2, sT3 = 81, 82, 83, 84
sWM, sWO, sWM15, sWO15 = 85, 86, 87, 88
sDO = 89
sHI = 90
sSTAMP = 92

vTID, vLANE, vW1, vTAB, vJ, vSLOT, vEXW, vEXR = 0, 1, 2, 3, 4, 5, 6, 7
vT = 10
vADDR = 16
vPK = 72
vRAW = 88
vPF, vTAB64 = 255, 254
AACC = 0
AFR = 128


def srd(n):
    return "s[%d:%d]" % (n, n + 3)


def vr(n, c=1):
    return "v%d" % n if c == 1 else "v[%d:%d]" % (n, n + c - 1)


def ar(n, c=1):
    return "a%d" % n if c == 1 else "a[%d:%d]" % (n, n + c - 1)


class E:
    def __init__(self):
        self.L = []
        self.vm = 0
        self.lg = 0
        self.vtag = {}
        self.ltag = {}
        self.vdone = 0
        self.ldone = 0
        self.last_m0 = False
        self.inloop = False
        self.x = 0

    def op(self, t):
        if self.inloop and ((self.x & 2 and t.startswith("v_perm")) or (self.x & 16 and t.startswith("v_permlane"))
                            or (self.x & 32 and t.startswith("v_perm_b32"))):
            return
        self.L.append("    " + t)
        self.last_m0 = t.split()[1].startswith("m0") if len(t.split()) > 1 and t.startswith("s_") else False

    def label(self, t):
        self.L.append(t + ":")

    def c(self, t):
        self.L.append("    ; " + t)

    def vmem(self, t, tag=None, count=True):
        if self.inloop and ((self.x & 1 and "dwordx2" in t) or (self.x & 8 and t.endswith("lds"))):
            if tag is not None:
                self.vtag[tag] = self.vm
            return
        if t.endswith("lds") and self.last_m0:
            self.op("s_nop 0")
        self.op(t)
        if count:
            self.vm += 1
            if tag is not None:
                self.vtag[tag] = self.vm

    def lds(self, t, tag=None):
        if self.inloop and self.x & 4 and t.startswith("ds_read"):
            self.ltag[tag] = self.lg
            return
        self.op(t)
        self.lg += 1
        if tag is not None:
            self.ltag[tag] = self.lg

    def wait(self, v=None, l=None):
        parts = []
        if v is not None:
            idx = self.vm if v == "all" else self.vtag[v]
            if idx > self.vdone:
                n = min(self.vm - idx, 63)
                parts.append("vmcnt(%d)" % n)
                self.vdone = self.vm - n
        if l is not None:
            idx = self.lg if l == "all" else self.ltag[l]
            if idx > self.ldone:
                n = min(self.lg - idx, 15)
                parts.append("lgkmcnt(%d)" % n)
                self.ldone = self.lg - n
        if parts:
            self.op("s_waitcnt " + " ".join(parts))
            return True
        return False


NSTEP = 52


def gen(o):
    e = E()
    R = o.ring
    assert vRAW + 8 * R <= 256
    vB1F = 16
    vB1R = 48
    stamps = []
    SPAIRS = [92, 96, 98, 100, 4, 6, 8, 14, 16, 18, 22, 24, 26, 86]

    def stamp(name):
        if not o.stamp:
            return
        k = len(stamps)
        stamps.append(name)
        e.op("s_memtime s[%d:%d]" % (SPAIRS[k], SPAIRS[k] + 1))

    def stamp_out():
        if not o.stamp:
            return
        e.op("s_memtime s[88:89]")
        e.op("s_memrealtime s[68:69]")
        e.op("s_waitcnt lgkmcnt(0)")
        e.op("s_mov_b64 exec, -1")
        if o.stamp == 2:
            lab = "L_so%d" % len(e.L)
            e.op("s_lshl_b32 s70, s2, 2")
            e.op("s_add_u32 s70, s70, s%d" % sW)
            e.op("s_cmp_lg_u32 s70, %d" % (o.stampwg * 4))
            e.op("s_cbranch_scc1 " + lab)
            e.op("v_mov_b32 v16, 0")
            sel = [2, 4, 5, 11, 13]
            for k, i in enumerate(sel):
                e.op("s_sub_u32 s70, s%d, s%d" % (SPAIRS[i], SPAIRS[0]))
                e.op("v_writelane_b32 v16, s70, %d" % k)
            e.op("s_sub_u32 s70, s88, s%d" % SPAIRS[0])
            e.op("v_writelane_b32 v16, s70, 5")
            e.op("s_sub_u32 s70, s68, s94")
            e.op("v_writelane_b32 v16, s70, 6")
            e.op("v_writelane_b32 v16, s%d, 7" % sT3)
            e.op("v_lshlrev_b32 v17, 3, v%d" % vLANE)
            e.op("s_mov_b64 exec, 0xff")
            e.op("buffer_store_dword v16, v17, %s, 0 offen offset:4" % srd(S_DBG))
            e.label(lab)
            return
        e.op("v_mov_b32 v16, 0")
        for k in range(len(stamps)):
            e.op("v_writelane_b32 v16, s%d, %d" % (SPAIRS[k], k))
        e.op("v_writelane_b32 v16, s88, 16")
        e.op("v_writelane_b32 v16, s94, 17")
        e.op("v_writelane_b32 v16, s68, 18")
        e.op("v_writelane_b32 v16, s%d, 19" % sT3)
        e.op("s_getreg_b32 s70, hwreg(HW_REG_XCC_ID)")
        e.op("v_writelane_b32 v16, s70, 20")
        e.op("s_getreg_b32 s70, hwreg(HW_REG_HW_ID)")
        e.op("v_writelane_b32 v16, s70, 21")
        e.op("s_lshl_b32 s70, s2, 2")
        e.op("s_add_u32 s70, s70, s%d" % sW)
        e.op("s_lshl_b32 s70, s70, 7")
        e.op("s_add_u32 s70, s70, 0x40000")
        e.op("v_lshlrev_b32 v17, 2, v%d" % vLANE)
        e.op("s_mov_b32 exec_hi, 0")
        e.op("buffer_store_dword v16, v17, %s, s70 offen" % srd(S_WS))

    e.op("s_cmp_ge_u32 s2, 256")
    e.op("s_cbranch_scc1 L_end")
    e.op("s_load_dwordx16 s[4:19], s[0:1], 0")
    e.op("s_load_dwordx8 s[20:27], s[0:1], 64")
    stamp("start")
    if o.stamp:
        e.op("s_memrealtime s[94:95]")
    e.op("v_lshrrev_b32 v10, 6, v0")
    e.op("v_and_b32 v%d, 63, v0" % vLANE)
    e.op("v_readfirstlane_b32 s%d, v10" % sW)
    if o.nsmap == 0:
        e.op("s_and_b32 s%d, s2, 7" % sNS)
        e.op("s_lshr_b32 s%d, s2, 3" % sMT)
    else:
        e.op("s_lshr_b32 s%d, s2, 5" % sNS)
        e.op("s_and_b32 s%d, s2, 31" % sMT)
    e.op("v_and_b32 v%d, 31, v0" % vJ)
    e.op("s_mov_b32 s%d, %d" % (sS1, S1))
    e.op("s_mov_b32 s%d, 0x05040100" % sSEL0)
    e.op("s_mov_b32 s%d, 0x07060302" % sSEL1)
    e.op("s_mov_b32 s%d, 0xffff0000" % sHI)
    e.op("s_lshl_b32 s%d, s%d, 2" % (sW4, sW))
    e.op("s_lshl_b32 s%d, s%d, 10" % (sWM, sW))
    e.op("s_lshl_b32 s%d, s%d, 12" % (sWO, sW))
    e.op("s_min_u32 s%d, s%d, 2" % (sT0, sW))
    e.op("s_lshl_b32 s%d, s%d, 10" % (sWM15, sT0))
    e.op("s_lshl_b32 s%d, s%d, 12" % (sWO15, sT0))
    e.op("s_mul_i32 s%d, s%d, 13312" % (sT0, sMT))
    e.op("s_add_u32 s%d, s%d, s%d" % (sT0, sT0, sWO))
    e.op("v_lshlrev_b32 v11, 4, v%d" % vLANE)
    e.op("v_add_u32 v11, s%d, v11" % sT0)
    e.op("s_lshl_b32 s%d, s%d, 3" % (sT1, sMT))
    e.op("s_add_u32 s%d, s%d, s%d" % (sT1, sT1, sNS))
    e.op("s_lshl_b32 s%d, s%d, 9" % (sT1, sT1))
    e.op("s_lshl_b32 s%d, s%d, 7" % (sT2, sW))
    e.op("s_add_u32 s%d, s%d, s%d" % (sT1, sT1, sT2))
    e.op("v_lshlrev_b32 v%d, 2, v%d" % (vSLOT, vJ))
    e.op("v_add_u32 v%d, s%d, v%d" % (vSLOT, sT1, vSLOT))
    e.op("v_mov_b32 v12, -1")
    e.op("v_lshrrev_b32 v13, 4, v%d" % vLANE)
    e.op("v_sub_u32 v13, v%d, v13" % vLANE)
    e.op("v_and_b32 v13, 3, v13")
    e.op("v_lshlrev_b32 v13, 4, v13")
    e.op("v_lshrrev_b32 v14, 2, v%d" % vLANE)
    e.op("v_lshl_add_u32 v%d, v14, 8, v13" % vTAB)
    e.op("v_add_u32 v%d, 64, v%d" % (vTAB64, vTAB))
    e.op("v_lshrrev_b32 v13, 5, v%d" % vLANE)
    e.op("s_mov_b32 s%d, %d" % (sT2, 13 * 128 * 1024))
    e.op("v_mul_lo_u32 v13, v13, s%d" % sT2)
    e.op("v_bfe_u32 v14, v%d, 4, 1" % vLANE)
    e.op("v_lshl_add_u32 v13, v14, 12, v13")
    e.op("v_and_b32 v14, 15, v%d" % vLANE)
    e.op("v_lshl_add_u32 v13, v14, 3, v13")
    e.op("s_lshl_b32 s%d, s%d, 13" % (sT2, sW))
    e.op("s_lshl_b32 s%d, s%d, 7" % (sT3, sNS))
    e.op("s_add_u32 s%d, s%d, s%d" % (sT2, sT2, sT3))
    e.op("v_add_u32 v%d, s%d, v13" % (vW1, sT2))
    e.op("s_lshl_b32 s%d, s%d, 2" % (sT2, sMT))
    e.op("s_add_u32 s%d, s%d, s%d" % (sT2, sT2, sW))
    e.op("s_mul_i32 s%d, s%d, 26" % (sT0, sT2))
    e.op("v_min_u32 v13, 25, v%d" % vLANE)
    e.op("v_add_u32 v13, s%d, v13" % sT0)
    e.op("v_lshlrev_b32 v13, 10, v13")
    e.op("v_add_u32 v13, s%d, v13" % sT3)
    e.op("s_lshl_b32 s%d, s%d, 11" % (sT0, sT2))
    e.op("v_lshlrev_b32 v14, 7, v14")
    e.op("v_add_u32 v14, s%d, v14" % sT0)
    e.op("s_waitcnt lgkmcnt(0)")
    stamp("karg")
    for (sd, sp, nb) in [(S_WS, 26, 0x100000), (S_IDX, 4, 4096 * 104), (S_TAB, 6, 256000), (S_W1, 14, 3328 * 1024)]:
        e.op("s_mov_b32 s%d, s%d" % (sd, sp))
        e.op("s_mov_b32 s%d, s%d" % (sd + 1, sp + 1))
        e.op("s_mov_b32 s%d, %d" % (sd + 2, nb))
        e.op("s_mov_b32 s%d, 0x00020000" % (sd + 3))
    if o.pfall:
        e.op("v_lshlrev_b32 v200, 7, v0")
        for k in range(8):
            e.op("s_mov_b32 s91, %d" % (k * 32768))
            e.op("buffer_load_dword v%d, v200, %s, s91 offen" % (202 + k, srd(S_TAB)))
        e.op("v_lshlrev_b32 v201, 10, v0")
        e.op("s_lshl_b32 s71, s%d, 7" % sNS)
        e.op("v_add_u32 v201, s71, v201")
        for k in range(13):
            e.op("s_mov_b32 s91, %d" % (k * 262144))
            e.op("buffer_load_dword v%d, v201, %s, s91 offen" % (210 + k, srd(S_W1)))
        for k in range(4):
            e.op("buffer_load_dword v%d, v11, %s, 0 offen offset:%d" % (224 + k, srd(S_IDX), 1024 * k))
        e.op("buffer_load_dword v228, v%d, %s, 0 offen sc1" % (vSLOT, srd(S_WS)))
        e.op("s_waitcnt vmcnt(0)")
    if o.delay:
        e.op("s_mov_b32 s91, %d" % o.delay)
        e.label("L_dly")
        e.op("s_nop 15")
        e.op("s_sub_u32 s91, s91, 1")
        e.op("s_cmp_lg_u32 s91, 0")
        e.op("s_cbranch_scc1 L_dly")
    e.op("s_add_u32 m0, s%d, %d" % (sWO, IDXB))
    e.vmem("buffer_store_dword v12, v%d, %s, 0 offen sc1" % (vSLOT, srd(S_WS)), "marker")
    for k in range(4):
        e.vmem("buffer_load_dwordx4 v11, %s, 0 offen offset:%d lds" % (srd(S_IDX), 1024 * k), "idx%d" % k)
    if o.prefetch:
        e.vmem("buffer_load_dword v%d, v13, %s, 0 offen" % (vPF, srd(S_W1)))
        e.vmem("buffer_load_dword v%d, v14, %s, 0 offen" % (vPF, srd(S_TAB)))
    e.op("s_load_dwordx4 s[%d:%d], s[10:11], 0" % (sWW, sWW + 3))
    e.op("s_load_dwordx2 s[%d:%d], s[10:11], 16" % (sWW + 4, sWW + 5))
    e.op("s_load_dword s%d, s[10:11], 24" % (sWW + 6))
    e.op("s_load_dword s%d, s[12:13], 0" % sBW)
    e.op("s_load_dword s%d, s[20:21], 0" % sB2)

    w1next = [0]
    cur_soff = [None]

    def w1_items(n):
        items = []
        for _ in range(n):
            k = w1next[0]
            if k >= NSTEP * 4:
                break
            w1next[0] += 1
            s, r = divmod(k, 4)
            q, f = divmod(s, 13)
            so = f * 131072 + q * 32768
            if cur_soff[0] != so:
                cur_soff[0] = so
                items.append(("s", lambda so=so: e.op("s_mov_b32 s%d, %d" % (sOFF, so))))
            dst = vRAW + (s % R) * 8 + r * 2
            items.append(("v", lambda dst=dst, r=r, s=s: e.vmem(
                "buffer_load_dwordx2 %s, v%d, %s, s%d offen offset:%d" % (vr(dst, 2), vW1, srd(S_W1), sOFF, r * 1024),
                "w1_%d_%d" % (s, r)), s))
        return items

    def run(items):
        for it in items:
            it[1]()

    run(w1_items(4 * o.pre1))
    e.op("s_lshl_b32 s%d, s%d, 2" % (sT0, sMT))
    e.op("s_add_u32 s%d, s%d, s%d" % (sT0, sT0, sW))
    e.op("s_and_b32 s%d, s%d, 63" % (sT0, sT0))

    def rot_dma(first, second):
        for i in range(16):
            if i:
                e.op("s_add_u32 s%d, s%d, 4" % (sT0, sT0))
                e.op("s_and_b32 s%d, s%d, 63" % (sT0, sT0))
            e.op("s_min_u32 s%d, s%d, 62" % (sT1, sT0))
            e.op("s_lshl_b32 s%d, s%d, 10" % (sT2, sT1))
            (lb, qo, tg) = first
            e.op("s_add_u32 m0, s%d, %d" % (sT2, lb))
            e.op("s_lshl_b32 s%d, s%d, 12" % (sDO, sT1))
            e.vmem("buffer_load_dwordx4 v%d, %s, s%d offen lds" % (vTAB64 if qo else vTAB, srd(S_TAB), sDO), tg)
            if second:
                (lb, qo, tg) = second
                e.op("s_add_u32 m0, s%d, %d" % (sT2, lb))
                e.vmem("buffer_load_dwordx4 v%d, %s, s%d offen lds" % (vTAB64 if qo else vTAB, srd(S_TAB), sDO), tg)
        e.op("s_add_u32 s%d, s%d, 4" % (sT0, sT0))
        e.op("s_and_b32 s%d, s%d, 63" % (sT0, sT0))

    if o.pair0:
        rot_dma((S0, 0, "q0"), (S1, 64, "q1"))
    else:
        rot_dma((S0, 0, "q0"), None)
    for (sd, sp, nb) in [(S_XW, 8, 4096 * 26), (S_B1, 16, 1024), (S_W2, 18, 1024), (S_OUT, 22, 8192), (S_DBG, 24, 256)]:
        e.op("s_mov_b32 s%d, s%d" % (sd, sp))
        e.op("s_mov_b32 s%d, s%d" % (sd + 1, sp + 1))
        e.op("s_mov_b32 s%d, %d" % (sd + 2, nb))
        e.op("s_mov_b32 s%d, 0x00020000" % (sd + 3))
    e.op("v_lshrrev_b32 v13, 5, v%d" % vLANE)
    e.op("v_lshl_add_u32 v13, v%d, 1, v13" % vJ)
    e.op("v_mul_u32_u24 v13, 52, v13")
    e.op("v_lshlrev_b32 v14, 4, v%d" % vLANE)
    EXW = [6, 8, 9]
    IDXA = [10, 11, 12, 13]
    for tau in range(4):
        e.op("s_add_u32 s%d, s%d, %d" % (sT1, sW, 1 + tau))
        e.op("s_and_b32 s%d, s%d, 3" % (sT1, sT1))
        e.op("s_mul_i32 s%d, s%d, 3328" % (sT2, sT1))
        e.op("s_mul_i32 s%d, s%d, 24576" % (sT3, sT1))
        e.op("s_add_u32 s%d, s%d, %d" % (sT3, sT3, EXB + (tau * 8192 if tau < 3 else 0)))
        if tau < 3:
            e.op("v_add_u32 v%d, s%d, v14" % (EXW[tau], sT3))
        else:
            e.op("v_add_u32 v%d, s%d, v14" % (vEXR, sT3))
        e.op("v_add_u32 v%d, s%d, v13" % (IDXA[tau], sT2))
    e.wait(v="idx3")
    e.op("s_barrier")
    stamp("idx")
    if not o.pair0:
        rot_dma((S1, 64, "q1"), None)
    run(w1_items(4 * (o.pre2 - o.pre1)))
    e.op("s_cmp_lg_u32 s%d, 0" % sW)
    e.op("s_cbranch_scc1 L_nosig")
    e.op("s_lshl_b32 s%d, s%d, 3" % (sT1, sMT))
    e.op("v_mov_b32 v14, s%d" % sT1)
    e.op("v_mov_b32 v15, 1")
    e.op("s_mov_b64 exec, 1")
    e.vmem("buffer_atomic_add v15, v14, %s, 0 offen sc1" % srd(S_DBG), count=False)
    e.op("s_mov_b64 exec, -1")
    e.label("L_nosig")
    e.op("s_waitcnt lgkmcnt(0)")
    for tau in range(4):
        for p in range(7):
            e.lds("ds_read2_b32 %s, v%d offset0:%d offset1:%d" % (vr(vADDR + tau * 14 + 2 * p, 2), IDXA[tau], 2 * p, 2 * p + 1),
                  "ix%d_%d" % (tau, p))
    for p in range(7):
        for tau in range(4):
            e.wait(l="ix%d_%d" % (tau, p))
            for f in (2 * p, 2 * p + 1):
                if f >= 13:
                    continue
                a = vADDR + tau * 14 + f
                t = vADDR + tau * 14 + 13 if p < 6 else 14
                t = 14 + (f & 1)
                e.op("v_add_lshl_u32 v%d, v%d, s%d, 2" % (t, a, sW4))
                e.op("v_and_or_b32 v%d, v%d, 48, s%d" % (t, t, sS1))
                e.op("v_lshl_add_u32 v%d, v%d, 6, v%d" % (a, a, t))

    def pack_items(s):
        b = vRAW + (s % R) * 8
        pk = vPK + (s & 1) * 8
        X = [b + 0, b + 2, b + 4, b + 6, b + 1, b + 3, b + 5, b + 7]

        def sw(r):
            return lambda: e.op("v_permlane16_swap_b32 v%d, v%d" % (b + 2 * r, b + 2 * r + 1))

        def pm(p, t):
            return lambda: e.op("v_perm_b32 v%d, v%d, v%d, s%d" % (pk + t * 4 + p, X[2 * p + 1], X[2 * p], sSEL1 if t else sSEL0))
        w = lambda: e.wait(v="w1_%d_3" % s)
        return [[w, sw(0), sw(1)], [pm(0, 0), pm(0, 1)], [pm(2, 0), pm(2, 1), sw(2), sw(3)], [pm(1, 0), pm(1, 1)],
                [pm(3, 0), pm(3, 1)]]

    def aread(s, tau):
        q, f = divmod(s, 13)
        off = {0: SLOT, 1: 0, 2: SLOT, 3: 0}[q]
        a = vADDR + tau * 14 + f
        e.lds("ds_read_b128 %s, v%d offset:%d" % (ar(AFR + (s & 1) * 16 + tau * 4, 4), a, off), "a%d_%d" % (s, tau))
        if q == 2:
            e.op("v_subrev_u32 v%d, s%d, v%d" % (a, sS1, a))

    for g in pack_items(0):
        for it in g:
            it()
    stamp("xform")
    e.wait(v="q1" if o.pair0 else "q0")
    e.op("s_barrier")
    stamp("q0")
    for s in (0, 1):
        for tau in range(4):
            aread(s, tau)

    def dma_items(i, lb, qo, tag):
        m, oo = (sWM15, sWO15) if i == 15 else (sWM, sWO)
        return [("s", lambda: e.op("s_add_u32 m0, s%d, %d" % (m, lb + i * 4096))),
                ("s", lambda: e.op("s_add_u32 s%d, s%d, %d" % (sDO, oo, i * 16384 + (qo & 128)))),
                ("v", lambda: e.vmem("buffer_load_dwordx4 v%d, %s, s%d offen lds" % (vTAB64 if qo & 64 else vTAB, srd(S_TAB), sDO), tag))]

    def dma_second(i, lb, qo, tag):
        return [("s", lambda: e.op("s_add_u32 m0, s%d, %d" % (sWM, lb + i * 4096))),
                ("v", lambda: e.vmem("buffer_load_dwordx4 v%d, %s, s%d offen lds" % (vTAB64 if qo & 64 else vTAB, srd(S_TAB), sDO), tag))]

    dma_plan = {s: [] for s in range(NSTEP)}
    units = []
    for i in range(8):
        units.append(dma_items(i, S0, 128, "q2") + dma_second(i, Q3B, 192, "q3a"))
        units.append(dma_items(8 + i, S0, 128, "q2"))
    st = list(range(12, o.p1end + 1))
    for k, u in enumerate(units):
        dma_plan[st[k * len(st) // len(units)]] += u
    st = list(range(25, o.p2end + 1))
    for k in range(8):
        dma_plan[st[k * len(st) // 8]] += dma_items(8 + k, Q3B, 192, "q3b")

    def w1count(s):
        if s < 11:
            return o.w1p0
        if s <= o.p1end:
            return o.w1p1
        return o.w1p2

    vW2 = vRAW + 0
    CAP = 5
    BAR = {11: ("q1",), 24: ("q2", "q3a"), 37: ("q3b",)}
    late = {}

    top = max(vRAW + 8 * R, vRAW + 96)
    assert top + 16 + 16 + 8 + 2 <= 254, "no room for late operands"
    vB1R = top
    vW2 = top + 16
    vXW = top + 32
    vCNT = top + 40
    vLA = top + 41

    def late_items():
        it = []
        it.append(("s", lambda: e.op("v_lshrrev_b32 v%d, 5, v%d" % (vLA, vLANE))))
        it.append(("s", lambda: e.op("v_lshlrev_b32 v%d, 5, v%d" % (vLA, vLA))))
        it.append(("s", lambda: e.op("s_lshl_b32 s%d, s%d, 7" % (sT0, sNS))))
        for k, off in enumerate((0, 16, 64, 80)):
            it.append(("v", lambda k=k, off=off: e.vmem("buffer_load_dwordx4 %s, v%d, %s, s%d offen offset:%d" % (
                vr(vB1R + 4 * k, 4), vLA, srd(S_B1), sT0, off), "b1")))
        for k, off in enumerate((0, 16, 64, 80)):
            it.append(("v", lambda k=k, off=off: e.vmem("buffer_load_dwordx4 %s, v%d, %s, s%d offen offset:%d" % (
                vr(vW2 + 4 * k, 4), vLA, srd(S_W2), sT0, off), "w2")))
        it.append(("s", lambda: e.op("s_lshl_b32 s%d, s%d, 2" % (sT1, sMT))))
        it.append(("s", lambda: e.op("s_add_u32 s%d, s%d, s%d" % (sT1, sT1, sW))))
        it.append(("s", lambda: e.op("s_mul_i32 s%d, s%d, %d" % (sT1, sT1, 32 * 26))))
        it.append(("s", lambda: e.op("v_mul_u32_u24 v10, 26, v%d" % vJ)))
        it.append(("s", lambda: e.op("v_and_b32 v10, -4, v10")))
        it.append(("v", lambda: e.vmem("buffer_load_dwordx4 %s, v10, %s, s%d offen" % (vr(vXW, 4), srd(S_XW), sT1), "xw0")))
        it.append(("v", lambda: e.vmem("buffer_load_dwordx3 %s, v10, %s, s%d offen offset:16" % (vr(vXW + 4, 3), srd(S_XW), sT1), "xw")))
        it.append(("s", lambda: e.op("s_lshl_b32 s%d, s%d, 3" % (sT2, sMT))))
        it.append(("s", lambda: e.op("v_mov_b32 v11, s%d" % sT2)))
        it.append(("v", lambda: e.vmem("buffer_load_dword v%d, v11, %s, 0 offen sc1" % (vCNT, srd(S_DBG)), "cnt")))
        return it

    LATE = late_items()
    late_steps = [44, 45, 46, 47]
    for k, s in enumerate(late_steps):
        late[s] = LATE[k * len(LATE) // len(late_steps):(k + 1) * len(LATE) // len(late_steps)]

    def b1_items():
        it = [("s", lambda: e.wait(v="b1"))]
        for i in range(16):
            a, ee = (i >> 2) & 1, 2 * (i & 3) + (i >> 3)
            src = vB1R + a * 8 + ee
            it.append(("s", lambda i=i, src=src: e.op("v_lshlrev_b32 v%d, 16, v%d" % (vB1F + i, src))))
            it.append(("s", lambda i=i, src=src: e.op("v_and_b32 v%d, s%d, v%d" % (vB1F + 16 + i, sHI, src))))
        return it
    B1I = b1_items()
    late[50] = B1I[:21]
    late[51] = B1I[21:]

    def exw(tau):
        return [("v", lambda k=k: e.lds("ds_write_b128 v%d, %s offset:%d" % (EXW[tau], ar(AACC + tau * 32 + 4 * k, 4), 1024 * k)))
                for k in range(8)]

    e.inloop = True
    e.x = o.x
    for s in range(NSTEP):
        e.c("---- step %d" % s)
        gaps = [[] for _ in range(8)]
        if s + 1 < NSTEP:
            pk = pack_items(s + 1)
            for g in range(5):
                gaps[g] += pk[g]
        rd = {1: 0, 3: 1, 5: 2, 7: 3}
        if s in BAR:
            def bar(s=s):
                stamp("pre%d" % s)
                e.wait(v=BAR[s][-1] if e.vtag[BAR[s][-1]] > e.vtag[BAR[s][0]] else BAR[s][0], l="all")
                e.op("s_barrier")
                stamp("post%d" % s)
            gaps[3].append(bar)
            gaps[3].append(lambda s=s: aread(s + 2, 0))
            gaps[4].append(lambda s=s: aread(s + 2, 1))
            gaps[5].append(lambda s=s: aread(s + 2, 2))
            gaps[7].append(lambda s=s: aread(s + 2, 3))
        elif s + 2 < NSTEP:
            for g, tau in rd.items():
                gaps[g].insert(0, lambda s=s, tau=tau: aread(s + 2, tau))
        nw = w1count(s)
        avail = 4 * (s + R + 1) - w1next[0]
        avail = min(avail, 4 * (s + R) + 4 - w1next[0])
        nw = max(0, min(nw, 4 * (s + R) - w1next[0] + 0))
        wi = w1_items(nw)
        assert w1next[0] >= min(NSTEP * 4, 4 * (s + 3)), ("W1 lead too small", s, w1next[0])
        di = dma_plan[s] + late.get(s, [])
        flex = []
        a, b = list(wi), list(di)
        while a or b:
            while a:
                it = a.pop(0)
                flex.append(it)
                if it[0] == "v":
                    break
            while b:
                it = b.pop(0)
                flex.append(it)
                if it[0] == "v":
                    break
        base = [len(g) + (1 if k in (1, 3, 5, 7) else 0) + (1 if (s + 2) // 13 == 2 and k in (1, 3, 5, 7) else 0)
                for k, g in enumerate(gaps)]
        free = [max(0, CAP - x) for x in base]
        tot = sum(free)
        g = 0
        n = len(flex)
        acc = 0
        placed = 0
        for k in range(8):
            acc += free[k]
            want = (n * acc + tot - 1) // tot if tot else n
            if k == 7:
                want = n
            while placed < want:
                gaps[k].append(flex[placed][1])
                placed += 1
        if s == NSTEP - 1:
            gaps[3] += [it[1] for it in exw(0)[:4]]
            gaps[4] += [it[1] for it in exw(0)[4:]]
            gaps[5] += [it[1] for it in exw(1)[:4]]
            gaps[6] += [it[1] for it in exw(1)[4:]]
            gaps[7] += [it[1] for it in exw(2)]
        for m in range(8):
            tau, t = m >> 1, m & 1
            if t == 0:
                e.wait(l="a%d_%d" % (s, tau))
            acc_r = ar(AACC + tau * 32 + t * 16, 16)
            e.op("v_mfma_f32_32x32x16_bf16 %s, %s, %s, %s" % (
                acc_r, vr(vPK + (s & 1) * 8 + t * 4, 4), ar(AFR + (s & 1) * 16 + tau * 4, 4), "0" if s == 0 else acc_r))
            for it in gaps[m]:
                it()
    e.inloop = False
    stamp("loop")
    vO = 48
    vX = vRAW
    assert vX + 96 <= top
    e.wait(l="all")
    e.op("s_barrier")
    stamp("exbar")
    for p in range(3):
        for k in range(8):
            e.lds("ds_read_b128 %s, v%d offset:%d" % (vr(vX + p * 32 + 4 * k, 4), vEXR, p * 8192 + k * 1024), "x%d_%d" % (p, k))
    for i in range(32):
        e.op("v_accvgpr_read_b32 v%d, a%d" % (vO + i, AACC + 96 + i))
    for p in range(3):
        for k in range(8):
            e.wait(l="x%d_%d" % (p, k))
            for hh in range(2):
                r = 4 * k + 2 * hh
                e.op("v_pk_add_f32 %s, %s, %s" % (vr(vO + r, 2), vr(vO + r, 2), vr(vX + p * 32 + r, 2)))
    for i in range(32):
        e.op("v_cvt_pk_bf16_f32 v%d, 0, v%d" % (vO + i, vO + i))
    for r in range(0, 32, 2):
        e.op("v_pk_add_f32 %s, %s, %s" % (vr(vO + r, 2), vr(vO + r, 2), vr(vB1F + r, 2)))
    for i in range(16):
        e.op("v_cvt_pk_bf16_f32 v%d, v%d, v%d" % (vO + i, vO + i, vO + 16 + i))
    for i in range(16):
        e.op("v_pk_max_i16 v%d, v%d, 0" % (vO + i, vO + i))
    e.wait(v="w2")
    e.op("v_mov_b32 v12, 0")
    for i in range(16):
        a, ee = (i >> 2) & 1, 2 * (i & 3) + (i >> 3)
        e.op("v_dot2_f32_bf16 v12, v%d, v%d, v12" % (vO + i, vW2 + a * 8 + ee))
    e.op("s_nop 2")
    e.op("v_mov_b32 v13, v12")
    e.op("s_nop 1")
    e.op("v_permlane32_swap_b32 v13, v12")
    e.op("v_add_f32 v12, v12, v13")
    stamp("epi")
    e.op("s_cmp_eq_u32 s%d, 0" % sNS)
    e.op("v_min_u32 v12, -2, v12")
    e.op("s_cbranch_scc1 L_final")
    e.vmem("buffer_store_dword v12, v%d, %s, 0 offen sc1" % (vSLOT, srd(S_WS)))
    stamp_out()
    e.op("s_endpgm")
    e.label("L_final")
    e.op("v_lshrrev_b32 v13, 5, v%d" % vLANE)
    e.op("v_lshl_add_u32 v13, v13, 11, v%d" % vSLOT)
    e.op("s_mov_b32 s%d, 0" % sT3)
    e.wait(v="cnt")
    e.label("L_cnt")
    e.op("v_readfirstlane_b32 s%d, v%d" % (sT0, vCNT))
    e.op("s_cmp_ge_u32 s%d, 8" % sT0)
    e.op("s_cbranch_scc1 L_poll")
    e.op("buffer_load_dword v%d, v11, %s, 0 offen sc1" % (vCNT, srd(S_DBG)))
    e.op("s_add_u32 s%d, s%d, 1" % (sT3, sT3))
    e.op("s_cmp_gt_u32 s%d, %d" % (sT3, o.maxpoll))
    e.op("s_waitcnt vmcnt(0)")
    e.op("s_cbranch_scc0 L_cnt")
    e.label("L_poll")
    for k in range(4):
        e.op("buffer_load_dword v%d, v13, %s, 0 offen offset:%d sc1" % (16 + k, srd(S_WS), 512 * k))
    e.op("s_add_u32 s%d, s%d, 1" % (sT3, sT3))
    e.op("v_and_b32 v14, 1, v%d" % vJ)
    e.op("v_lshlrev_b32 v14, 4, v14")
    for k in range(7):
        e.op("v_alignbit_b32 v%d, v%d, v%d, v14" % (24 + k, vXW + min(k + 1, 6), vXW + k))
    e.op("v_and_b32 v30, 0xffff, v30")
    e.op("s_and_b32 s%d, s%d, 0xffff" % (sWW + 6, sWW + 6))
    e.op("v_mov_b32 v15, 0")
    for k in range(7):
        e.op("v_dot2_f32_bf16 v15, v%d, s%d, v15" % (24 + k, sWW + k))
    e.op("s_lshl_b32 s%d, s%d, 16" % (sT1, sBW))
    e.op("s_lshl_b32 s%d, s%d, 16" % (sT2, sB2))
    e.op("s_nop 1")
    e.op("v_cvt_pk_bf16_f32 v15, 0, v15")
    e.op("v_add_f32 v15, s%d, v15" % sT1)
    e.op("v_cvt_pk_bf16_f32 v15, 0, v15")
    e.op("s_waitcnt vmcnt(0)")
    e.op("s_mov_b32 exec_hi, 0")
    e.op("v_mov_b32 v16, v12")
    e.op("s_mov_b32 exec_hi, -1")
    e.op("v_max_u32 v20, v16, v17")
    e.op("v_max3_u32 v20, v20, v18, v19")
    e.op("s_cmp_gt_u32 s%d, %d" % (sT3, o.maxpoll))
    e.op("v_cmp_eq_u32 vcc, -1, v20")
    e.op("s_cbranch_scc1 L_go")
    e.op("s_cbranch_vccnz L_poll")
    e.label("L_go")
    e.op("v_add_f32 v16, v16, v17")
    e.op("v_add_f32 v18, v18, v19")
    e.op("v_add_f32 v16, v16, v18")
    e.op("v_mov_b32 v17, v16")
    e.op("s_nop 1")
    e.op("v_permlane32_swap_b32 v17, v16")
    e.op("v_add_f32 v16, v16, v17")
    e.op("v_cvt_pk_bf16_f32 v16, 0, v16")
    e.op("v_add_f32 v16, s%d, v16" % sT2)
    e.op("v_cvt_pk_bf16_f32 v16, 0, v16")
    e.op("v_add_f32 v16, v15, v16")
    e.op("v_cvt_pk_bf16_f32 v16, 0, v16")
    e.op("v_mul_f32 v16, 0xbfb8aa3b, v16")
    e.op("v_exp_f32 v16, v16")
    e.op("s_nop 0")
    e.op("v_add_f32 v16, 1.0, v16")
    e.op("v_rcp_f32 v16, v16")
    e.op("s_lshl_b32 s%d, s%d, 2" % (sT1, sMT))
    e.op("s_add_u32 s%d, s%d, s%d" % (sT1, sT1, sW))
    e.op("s_lshl_b32 s%d, s%d, 6" % (sT1, sT1))
    e.op("v_cvt_pk_bf16_f32 v16, v16, v16")
    e.op("v_lshlrev_b32 v17, 1, v%d" % vJ)
    e.op("s_mov_b32 exec_hi, 0")
    e.op("buffer_store_short v16, v17, %s, s%d offen" % (srd(S_OUT), sT1))
    stamp_out()
    if o.stamp:
        print('stamps:', stamps)
    e.label("L_end")
    e.op("s_endpgm")

    txt = HEADER + "; @launch grid=(256,1,1) block=(256,1,1) lds=%d\n" % LDS_TOTAL
    txt += '.amdgcn_target "amdgcn-amd-amdhsa--gfx950"\n.text\n.globl %s_kernel\n.p2align 8\n.type %s_kernel,@function\n%s_kernel:\n' % (NAME, NAME, NAME)
    txt += "\n".join(e.L) + "\n"
    txt += """.section .rodata,"a"
.p2align 6
.amdhsa_kernel %s_kernel
  .amdhsa_next_free_vgpr 416
  .amdhsa_next_free_sgpr 102
  .amdhsa_accum_offset 256
  .amdhsa_group_segment_fixed_size 0
  .amdhsa_kernarg_size 96
  .amdhsa_user_sgpr_count 2
  .amdhsa_user_sgpr_kernarg_segment_ptr 1
  .amdhsa_system_sgpr_workgroup_id_x 1
.end_amdhsa_kernel
""" % NAME
    return txt


def main():
    ap = argparse.ArgumentParser()
    ap.add_argument("-o", default="cdna_kernels/%s.s" % NAME)
    ap.add_argument("--ring", type=int, default=12)
    ap.add_argument("--pre1", type=int, default=2)
    ap.add_argument("--pre2", type=int, default=5)
    ap.add_argument("--w1p0", type=int, default=6)
    ap.add_argument("--w1p1", type=int, default=3)
    ap.add_argument("--w1p2", type=int, default=5)
    ap.add_argument("--p1end", type=int, default=21)
    ap.add_argument("--p2end", type=int, default=32)
    ap.add_argument("--pair0", type=int, default=1)
    ap.add_argument("--prefetch", type=int, default=1)
    ap.add_argument("--nsmap", type=int, default=0)
    ap.add_argument("--maxpoll", type=int, default=200000)
    ap.add_argument("--x", type=int, default=0)
    ap.add_argument("--pfall", type=int, default=0)
    ap.add_argument("--delay", type=int, default=0)
    ap.add_argument("--stamp", type=int, default=0)
    ap.add_argument("--stampwg", type=int, default=0)
    o = ap.parse_args()
    open(o.o, "w").write(gen(o))


if __name__ == "__main__":
    main()
```

```python
import sys, argparse

NAME = "standalone__deep_cross_wide_deep__recsys"

HEADER = open("cdna_kernels/%s.s.ref" % NAME).read().split("; @launch")[0]

SLOT = 64512
SPARE = 163840 - 2 * SLOT
S1 = SPARE
S0 = SPARE + SLOT
Q3B = 0
IDXB = 0
EXB = SLOT
LDS_TOTAL = 163840

S_IDX, S_TAB, S_W1, S_XW, S_B1, S_W2, S_OUT, S_DBG, S_WS = 28, 32, 36, 40, 44, 48, 52, 56, 60
sW, sNS, sMT = 64, 65, 66
sW4 = 67
sS1 = 68
sSEL0, sSEL1 = 69, 70
sOFF = 71
sWW = 72
sBW, sB2 = 79, 80
sT0, sT1, sT2, sT3 = 81, 82, 83, 84
sWM, sWO, sWM15, sWO15 = 85, 86, 87, 88
sDO = 89
sHI = 90
sSTAMP = 92

vTID, vLANE, vW1, vTAB, vJ, vSLOT, vEXW, vEXR = 0, 1, 2, 3, 4, 5, 6, 7
vT = 10
vADDR = 16
vPK = 72
vRAW = 88
vPF, vTAB64 = 255, 254
AACC = 0
AFR = 128


def srd(n):
    return "s[%d:%d]" % (n, n + 3)


def vr(n, c=1):
    return "v%d" % n if c == 1 else "v[%d:%d]" % (n, n + c - 1)


def ar(n, c=1):
    return "a%d" % n if c == 1 else "a[%d:%d]" % (n, n + c - 1)


class E:
    def __init__(self):
        self.L = []
        self.vm = 0
        self.lg = 0
        self.vtag = {}
        self.ltag = {}
        self.vdone = 0
        self.ldone = 0
        self.last_m0 = False
        self.inloop = False
        self.x = 0

    def op(self, t):
        if self.inloop and ((self.x & 2 and t.startswith("v_perm")) or (self.x & 16 and t.startswith("v_permlane"))
                            or (self.x & 32 and t.startswith("v_perm_b32"))):
            return
        self.L.append("    " + t)
        self.last_m0 = t.split()[1].startswith("m0") if len(t.split()) > 1 and t.startswith("s_") else False

    def label(self, t):
        self.L.append(t + ":")

    def c(self, t):
        self.L.append("    ; " + t)

    def vmem(self, t, tag=None, count=True):
        if self.inloop and ((self.x & 1 and "dwordx2" in t) or (self.x & 8 and t.endswith("lds"))):
            if tag is not None:
                self.vtag[tag] = self.vm
            return
        if t.endswith("lds") and self.last_m0:
            self.op("s_nop 0")
        self.op(t)
        if count:
            self.vm += 1
            if tag is not None:
                self.vtag[tag] = self.vm

    def lds(self, t, tag=None):
        if self.inloop and self.x & 4 and t.startswith("ds_read"):
            self.ltag[tag] = self.lg
            return
        self.op(t)
        self.lg += 1
        if tag is not None:
            self.ltag[tag] = self.lg

    def wait(self, v=None, l=None):
        parts = []
        if v is not None:
            idx = self.vm if v == "all" else self.vtag[v]
            if idx > self.vdone:
                n = min(self.vm - idx, 63)
                parts.append("vmcnt(%d)" % n)
                self.vdone = self.vm - n
        if l is not None:
            idx = self.lg if l == "all" else self.ltag[l]
            if idx > self.ldone:
                n = min(self.lg - idx, 15)
                parts.append("lgkmcnt(%d)" % n)
                self.ldone = self.lg - n
        if parts:
            self.op("s_waitcnt " + " ".join(parts))
            return True
        return False


NSTEP = 52


def gen(o):
    e = E()
    R = o.ring
    assert vRAW + 8 * R <= 256
    vB1F = 16
    vB1R = 48
    stamps = []
    SPAIRS = [92, 96, 98, 100, 4, 6, 8, 14, 16, 18, 22, 24, 26, 86]

    def stamp(name):
        if not o.stamp:
            return
        k = len(stamps)
        stamps.append(name)
        e.op("s_memtime s[%d:%d]" % (SPAIRS[k], SPAIRS[k] + 1))

    def stamp_out():
        if not o.stamp:
            return
        e.op("s_memtime s[88:89]")
        e.op("s_memrealtime s[68:69]")
        e.op("s_waitcnt lgkmcnt(0)")
        e.op("s_mov_b64 exec, -1")
        if o.stamp == 2:
            lab = "L_so%d" % len(e.L)
            e.op("s_lshl_b32 s70, s2, 2")
            e.op("s_add_u32 s70, s70, s%d" % sW)
            e.op("s_cmp_lg_u32 s70, %d" % (o.stampwg * 4))
            e.op("s_cbranch_scc1 " + lab)
            e.op("v_mov_b32 v16, 0")
            sel = [2, 4, 5, 11, 13]
            for k, i in enumerate(sel):
                e.op("s_sub_u32 s70, s%d, s%d" % (SPAIRS[i], SPAIRS[0]))
                e.op("v_writelane_b32 v16, s70, %d" % k)
            e.op("s_sub_u32 s70, s88, s%d" % SPAIRS[0])
            e.op("v_writelane_b32 v16, s70, 5")
            e.op("s_sub_u32 s70, s68, s94")
            e.op("v_writelane_b32 v16, s70, 6")
            e.op("v_writelane_b32 v16, s%d, 7" % sT3)
            e.op("v_lshlrev_b32 v17, 3, v%d" % vLANE)
            e.op("s_mov_b64 exec, 0xff")
            e.op("buffer_store_dword v16, v17, %s, 0 offen offset:4" % srd(S_DBG))
            e.label(lab)
            return
        e.op("v_mov_b32 v16, 0")
        for k in range(len(stamps)):
            e.op("v_writelane_b32 v16, s%d, %d" % (SPAIRS[k], k))
        e.op("v_writelane_b32 v16, s88, 16")
        e.op("v_writelane_b32 v16, s94, 17")
        e.op("v_writelane_b32 v16, s68, 18")
        e.op("v_writelane_b32 v16, s%d, 19" % sT3)
        e.op("s_getreg_b32 s70, hwreg(HW_REG_XCC_ID)")
        e.op("v_writelane_b32 v16, s70, 20")
        e.op("s_getreg_b32 s70, hwreg(HW_REG_HW_ID)")
        e.op("v_writelane_b32 v16, s70, 21")
        e.op("s_lshl_b32 s70, s2, 2")
        e.op("s_add_u32 s70, s70, s%d" % sW)
        e.op("s_lshl_b32 s70, s70, 7")
        e.op("s_add_u32 s70, s70, 0x40000")
        e.op("v_lshlrev_b32 v17, 2, v%d" % vLANE)
        e.op("s_mov_b32 exec_hi, 0")
        e.op("buffer_store_dword v16, v17, %s, s70 offen" % srd(S_WS))

    e.op("s_cmp_ge_u32 s2, 256")
    e.op("s_cbranch_scc1 L_end")
    e.op("s_load_dwordx16 s[4:19], s[0:1], 0")
    e.op("s_load_dwordx8 s[20:27], s[0:1], 64")
    stamp("start")
    if o.stamp:
        e.op("s_memrealtime s[94:95]")
    e.op("v_lshrrev_b32 v10, 6, v0")
    e.op("v_and_b32 v%d, 63, v0" % vLANE)
    e.op("v_readfirstlane_b32 s%d, v10" % sW)
    if o.nsmap == 0:
        e.op("s_and_b32 s%d, s2, 7" % sNS)
        e.op("s_lshr_b32 s%d, s2, 3" % sMT)
    else:
        e.op("s_lshr_b32 s%d, s2, 5" % sNS)
        e.op("s_and_b32 s%d, s2, 31" % sMT)
    e.op("v_and_b32 v%d, 31, v0" % vJ)
    e.op("s_mov_b32 s%d, %d" % (sS1, S1))
    e.op("s_mov_b32 s%d, 0x05040100" % sSEL0)
    e.op("s_mov_b32 s%d, 0x07060302" % sSEL1)
    e.op("s_mov_b32 s%d, 0xffff0000" % sHI)
    e.op("s_lshl_b32 s%d, s%d, 2" % (sW4, sW))
    e.op("s_lshl_b32 s%d, s%d, 10" % (sWM, sW))
    e.op("s_lshl_b32 s%d, s%d, 12" % (sWO, sW))
    e.op("s_min_u32 s%d, s%d, 2" % (sT0, sW))
    e.op("s_lshl_b32 s%d, s%d, 10" % (sWM15, sT0))
    e.op("s_lshl_b32 s%d, s%d, 12" % (sWO15, sT0))
    e.op("s_mul_i32 s%d, s%d, 13312" % (sT0, sMT))
    e.op("s_add_u32 s%d, s%d, s%d" % (sT0, sT0, sWO))
    e.op("v_lshlrev_b32 v11, 4, v%d" % vLANE)
    e.op("v_add_u32 v11, s%d, v11" % sT0)
    e.op("s_lshl_b32 s%d, s%d, 3" % (sT1, sMT))
    e.op("s_add_u32 s%d, s%d, s%d" % (sT1, sT1, sNS))
    e.op("s_lshl_b32 s%d, s%d, 9" % (sT1, sT1))
    e.op("s_lshl_b32 s%d, s%d, 7" % (sT2, sW))
    e.op("s_add_u32 s%d, s%d, s%d" % (sT1, sT1, sT2))
    e.op("v_lshlrev_b32 v%d, 2, v%d" % (vSLOT, vJ))
    e.op("v_add_u32 v%d, s%d, v%d" % (vSLOT, sT1, vSLOT))
    e.op("v_mov_b32 v12, -1")
    e.op("v_lshrrev_b32 v13, 4, v%d" % vLANE)
    e.op("v_sub_u32 v13, v%d, v13" % vLANE)
    e.op("v_and_b32 v13, 3, v13")
    e.op("v_lshlrev_b32 v13, 4, v13")
    e.op("v_lshrrev_b32 v14, 2, v%d" % vLANE)
    e.op("v_lshl_add_u32 v%d, v14, 8, v13" % vTAB)
    e.op("v_add_u32 v%d, 64, v%d" % (vTAB64, vTAB))
    e.op("v_lshrrev_b32 v13, 5, v%d" % vLANE)
    e.op("s_mov_b32 s%d, %d" % (sT2, 13 * 128 * 1024))
    e.op("v_mul_lo_u32 v13, v13, s%d" % sT2)
    e.op("v_bfe_u32 v14, v%d, 4, 1" % vLANE)
    e.op("v_lshl_add_u32 v13, v14, 12, v13")
    e.op("v_and_b32 v14, 15, v%d" % vLANE)
    e.op("v_lshl_add_u32 v13, v14, 3, v13")
    e.op("s_lshl_b32 s%d, s%d, 13" % (sT2, sW))
    e.op("s_lshl_b32 s%d, s%d, 7" % (sT3, sNS))
    e.op("s_add_u32 s%d, s%d, s%d" % (sT2, sT2, sT3))
    e.op("v_add_u32 v%d, s%d, v13" % (vW1, sT2))
    e.op("s_lshl_b32 s%d, s%d, 2" % (sT2, sMT))
    e.op("s_add_u32 s%d, s%d, s%d" % (sT2, sT2, sW))
    e.op("s_mul_i32 s%d, s%d, 26" % (sT0, sT2))
    e.op("v_min_u32 v13, 25, v%d" % vLANE)
    e.op("v_add_u32 v13, s%d, v13" % sT0)
    e.op("v_lshlrev_b32 v13, 10, v13")
    e.op("v_add_u32 v13, s%d, v13" % sT3)
    e.op("s_lshl_b32 s%d, s%d, 11" % (sT0, sT2))
    e.op("v_lshlrev_b32 v14, 7, v14")
    e.op("v_add_u32 v14, s%d, v14" % sT0)
    e.op("s_waitcnt lgkmcnt(0)")
    stamp("karg")
    for (sd, sp, nb) in [(S_WS, 26, 0x100000), (S_IDX, 4, 4096 * 104), (S_TAB, 6, 256000), (S_W1, 14, 3328 * 1024)]:
        e.op("s_mov_b32 s%d, s%d" % (sd, sp))
        e.op("s_mov_b32 s%d, s%d" % (sd + 1, sp + 1))
        e.op("s_mov_b32 s%d, %d" % (sd + 2, nb))
        e.op("s_mov_b32 s%d, 0x00020000" % (sd + 3))
    if o.pfall:
        e.op("v_lshlrev_b32 v200, 7, v0")
        for k in range(8):
            e.op("s_mov_b32 s91, %d" % (k * 32768))
            e.op("buffer_load_dword v%d, v200, %s, s91 offen" % (202 + k, srd(S_TAB)))
        e.op("v_lshlrev_b32 v201, 10, v0")
        e.op("s_lshl_b32 s71, s%d, 7" % sNS)
        e.op("v_add_u32 v201, s71, v201")
        for k in range(13):
            e.op("s_mov_b32 s91, %d" % (k * 262144))
            e.op("buffer_load_dword v%d, v201, %s, s91 offen" % (210 + k, srd(S_W1)))
        for k in range(4):
            e.op("buffer_load_dword v%d, v11, %s, 0 offen offset:%d" % (224 + k, srd(S_IDX), 1024 * k))
        e.op("buffer_load_dword v228, v%d, %s, 0 offen sc1" % (vSLOT, srd(S_WS)))
        e.op("s_waitcnt vmcnt(0)")
    if o.delay:
        e.label("L_dly")
        e.op("s_memtime s[72:73]")
        e.op("s_waitcnt lgkmcnt(0)")
        e.op("s_sub_u32 s91, s72, s92")
        e.op("s_cmp_lt_u32 s91, %d" % o.delay)
        e.op("s_cbranch_scc1 L_dly")
    e.op("s_add_u32 m0, s%d, %d" % (sWO, IDXB))
    e.vmem("buffer_store_dword v12, v%d, %s, 0 offen sc1" % (vSLOT, srd(S_WS)), "marker")
    for k in range(4):
        e.vmem("buffer_load_dwordx4 v11, %s, 0 offen offset:%d lds" % (srd(S_IDX), 1024 * k), "idx%d" % k)
    if o.prefetch:
        e.vmem("buffer_load_dword v%d, v13, %s, 0 offen" % (vPF, srd(S_W1)))
        e.vmem("buffer_load_dword v%d, v14, %s, 0 offen" % (vPF, srd(S_TAB)))
    e.op("s_load_dwordx4 s[%d:%d], s[10:11], 0" % (sWW, sWW + 3))
    e.op("s_load_dwordx2 s[%d:%d], s[10:11], 16" % (sWW + 4, sWW + 5))
    e.op("s_load_dword s%d, s[10:11], 24" % (sWW + 6))
    e.op("s_load_dword s%d, s[12:13], 0" % sBW)
    e.op("s_load_dword s%d, s[20:21], 0" % sB2)

    w1next = [0]
    cur_soff = [None]

    def w1_items(n):
        items = []
        for _ in range(n):
            k = w1next[0]
            if k >= NSTEP * 4:
                break
            w1next[0] += 1
            s, r = divmod(k, 4)
            q, f = divmod(s, 13)
            so = f * 131072 + q * 32768
            if cur_soff[0] != so:
                cur_soff[0] = so
                items.append(("s", lambda so=so: e.op("s_mov_b32 s%d, %d" % (sOFF, so))))
            dst = vRAW + (s % R) * 8 + r * 2
            items.append(("v", lambda dst=dst, r=r, s=s: e.vmem(
                "buffer_load_dwordx2 %s, v%d, %s, s%d offen offset:%d" % (vr(dst, 2), vW1, srd(S_W1), sOFF, r * 1024),
                "w1_%d_%d" % (s, r)), s))
        return items

    def run(items):
        for it in items:
            it[1]()

    run(w1_items(4 * o.pre1))
    e.op("s_lshl_b32 s%d, s%d, 2" % (sT0, sMT))
    e.op("s_add_u32 s%d, s%d, s%d" % (sT0, sT0, sW))
    e.op("s_and_b32 s%d, s%d, 63" % (sT0, sT0))

    def rot_dma(first, second):
        for i in range(16):
            if i:
                e.op("s_add_u32 s%d, s%d, 4" % (sT0, sT0))
                e.op("s_and_b32 s%d, s%d, 63" % (sT0, sT0))
            e.op("s_min_u32 s%d, s%d, 62" % (sT1, sT0))
            e.op("s_lshl_b32 s%d, s%d, 10" % (sT2, sT1))
            (lb, qo, tg) = first
            e.op("s_add_u32 m0, s%d, %d" % (sT2, lb))
            e.op("s_lshl_b32 s%d, s%d, 12" % (sDO, sT1))
            e.vmem("buffer_load_dwordx4 v%d, %s, s%d offen lds" % (vTAB64 if qo else vTAB, srd(S_TAB), sDO), tg)
            if second:
                (lb, qo, tg) = second
                e.op("s_add_u32 m0, s%d, %d" % (sT2, lb))
                e.vmem("buffer_load_dwordx4 v%d, %s, s%d offen lds" % (vTAB64 if qo else vTAB, srd(S_TAB), sDO), tg)
        e.op("s_add_u32 s%d, s%d, 4" % (sT0, sT0))
        e.op("s_and_b32 s%d, s%d, 63" % (sT0, sT0))

    if o.pair0:
        rot_dma((S0, 0, "q0"), (S1, 64, "q1"))
    else:
        rot_dma((S0, 0, "q0"), None)
    for (sd, sp, nb) in [(S_XW, 8, 4096 * 26), (S_B1, 16, 1024), (S_W2, 18, 1024), (S_OUT, 22, 8192), (S_DBG, 24, 256)]:
        e.op("s_mov_b32 s%d, s%d" % (sd, sp))
        e.op("s_mov_b32 s%d, s%d" % (sd + 1, sp + 1))
        e.op("s_mov_b32 s%d, %d" % (sd + 2, nb))
        e.op("s_mov_b32 s%d, 0x00020000" % (sd + 3))
    e.op("v_lshrrev_b32 v13, 5, v%d" % vLANE)
    e.op("v_lshl_add_u32 v13, v%d, 1, v13" % vJ)
    e.op("v_mul_u32_u24 v13, 52, v13")
    e.op("v_lshlrev_b32 v14, 4, v%d" % vLANE)
    EXW = [6, 8, 9]
    IDXA = [10, 11, 12, 13]
    for tau in range(4):
        e.op("s_add_u32 s%d, s%d, %d" % (sT1, sW, 1 + tau))
        e.op("s_and_b32 s%d, s%d, 3" % (sT1, sT1))
        e.op("s_mul_i32 s%d, s%d, 3328" % (sT2, sT1))
        e.op("s_mul_i32 s%d, s%d, 24576" % (sT3, sT1))
        e.op("s_add_u32 s%d, s%d, %d" % (sT3, sT3, EXB + (tau * 8192 if tau < 3 else 0)))
        if tau < 3:
            e.op("v_add_u32 v%d, s%d, v14" % (EXW[tau], sT3))
        else:
            e.op("v_add_u32 v%d, s%d, v14" % (vEXR, sT3))
        e.op("v_add_u32 v%d, s%d, v13" % (IDXA[tau], sT2))
    e.wait(v="idx3")
    e.op("s_barrier")
    stamp("idx")
    if not o.pair0:
        rot_dma((S1, 64, "q1"), None)
    run(w1_items(4 * (o.pre2 - o.pre1)))
    e.op("s_cmp_lg_u32 s%d, 0" % sW)
    e.op("s_cbranch_scc1 L_nosig")
    e.op("s_lshl_b32 s%d, s%d, 3" % (sT1, sMT))
    e.op("v_mov_b32 v14, s%d" % sT1)
    e.op("v_mov_b32 v15, 1")
    e.op("s_mov_b64 exec, 1")
    e.vmem("buffer_atomic_add v15, v14, %s, 0 offen sc1" % srd(S_DBG), count=False)
    e.op("s_mov_b64 exec, -1")
    e.label("L_nosig")
    e.op("s_waitcnt lgkmcnt(0)")
    for tau in range(4):
        for p in range(7):
            e.lds("ds_read2_b32 %s, v%d offset0:%d offset1:%d" % (vr(vADDR + tau * 14 + 2 * p, 2), IDXA[tau], 2 * p, 2 * p + 1),
                  "ix%d_%d" % (tau, p))
    for p in range(7):
        for tau in range(4):
            e.wait(l="ix%d_%d" % (tau, p))
            for f in (2 * p, 2 * p + 1):
                if f >= 13:
                    continue
                a = vADDR + tau * 14 + f
                t = vADDR + tau * 14 + 13 if p < 6 else 14
                t = 14 + (f & 1)
                e.op("v_add_lshl_u32 v%d, v%d, s%d, 2" % (t, a, sW4))
                e.op("v_and_or_b32 v%d, v%d, 48, s%d" % (t, t, sS1))
                e.op("v_lshl_add_u32 v%d, v%d, 6, v%d" % (a, a, t))

    def pack_items(s):
        b = vRAW + (s % R) * 8
        pk = vPK + (s & 1) * 8
        X = [b + 0, b + 2, b + 4, b + 6, b + 1, b + 3, b + 5, b + 7]

        def sw(r):
            return lambda: e.op("v_permlane16_swap_b32 v%d, v%d" % (b + 2 * r, b + 2 * r + 1))

        def pm(p, t):
            return lambda: e.op("v_perm_b32 v%d, v%d, v%d, s%d" % (pk + t * 4 + p, X[2 * p + 1], X[2 * p], sSEL1 if t else sSEL0))
        w = lambda: e.wait(v="w1_%d_3" % s)
        return [[w, sw(0), sw(1)], [pm(0, 0), pm(0, 1)], [pm(2, 0), pm(2, 1), sw(2), sw(3)], [pm(1, 0), pm(1, 1)],
                [pm(3, 0), pm(3, 1)]]

    def aread(s, tau):
        q, f = divmod(s, 13)
        off = {0: SLOT, 1: 0, 2: SLOT, 3: 0}[q]
        a = vADDR + tau * 14 + f
        e.lds("ds_read_b128 %s, v%d offset:%d" % (ar(AFR + (s & 1) * 16 + tau * 4, 4), a, off), "a%d_%d" % (s, tau))
        if q == 2:
            e.op("v_subrev_u32 v%d, s%d, v%d" % (a, sS1, a))

    for g in pack_items(0):
        for it in g:
            it()
    stamp("xform")
    e.wait(v="q1" if o.pair0 else "q0")
    e.op("s_barrier")
    stamp("q0")
    for s in (0, 1):
        for tau in range(4):
            aread(s, tau)

    def dma_items(i, lb, qo, tag):
        m, oo = (sWM15, sWO15) if i == 15 else (sWM, sWO)
        return [("s", lambda: e.op("s_add_u32 m0, s%d, %d" % (m, lb + i * 4096))),
                ("s", lambda: e.op("s_add_u32 s%d, s%d, %d" % (sDO, oo, i * 16384 + (qo & 128)))),
                ("v", lambda: e.vmem("buffer_load_dwordx4 v%d, %s, s%d offen lds" % (vTAB64 if qo & 64 else vTAB, srd(S_TAB), sDO), tag))]

    def dma_second(i, lb, qo, tag):
        return [("s", lambda: e.op("s_add_u32 m0, s%d, %d" % (sWM, lb + i * 4096))),
                ("v", lambda: e.vmem("buffer_load_dwordx4 v%d, %s, s%d offen lds" % (vTAB64 if qo & 64 else vTAB, srd(S_TAB), sDO), tag))]

    dma_plan = {s: [] for s in range(NSTEP)}
    units = []
    for i in range(8):
        units.append(dma_items(i, S0, 128, "q2") + dma_second(i, Q3B, 192, "q3a"))
        units.append(dma_items(8 + i, S0, 128, "q2"))
    st = list(range(12, o.p1end + 1))
    for k, u in enumerate(units):
        dma_plan[st[k * len(st) // len(units)]] += u
    st = list(range(25, o.p2end + 1))
    for k in range(8):
        dma_plan[st[k * len(st) // 8]] += dma_items(8 + k, Q3B, 192, "q3b")

    def w1count(s):
        if s < 11:
            return o.w1p0
        if s <= o.p1end:
            return o.w1p1
        return o.w1p2

    vW2 = vRAW + 0
    CAP = 5
    BAR = {11: ("q1",), 24: ("q2", "q3a"), 37: ("q3b",)}
    late = {}

    top = max(vRAW + 8 * R, vRAW + 96)
    assert top + 16 + 16 + 8 + 2 <= 254, "no room for late operands"
    vB1R = top
    vW2 = top + 16
    vXW = top + 32
    vCNT = top + 40
    vLA = top + 41

    def late_items():
        it = []
        it.append(("s", lambda: e.op("v_lshrrev_b32 v%d, 5, v%d" % (vLA, vLANE))))
        it.append(("s", lambda: e.op("v_lshlrev_b32 v%d, 5, v%d" % (vLA, vLA))))
        it.append(("s", lambda: e.op("s_lshl_b32 s%d, s%d, 7" % (sT0, sNS))))
        for k, off in enumerate((0, 16, 64, 80)):
            it.append(("v", lambda k=k, off=off: e.vmem("buffer_load_dwordx4 %s, v%d, %s, s%d offen offset:%d" % (
                vr(vB1R + 4 * k, 4), vLA, srd(S_B1), sT0, off), "b1")))
        for k, off in enumerate((0, 16, 64, 80)):
            it.append(("v", lambda k=k, off=off: e.vmem("buffer_load_dwordx4 %s, v%d, %s, s%d offen offset:%d" % (
                vr(vW2 + 4 * k, 4), vLA, srd(S_W2), sT0, off), "w2")))
        it.append(("s", lambda: e.op("s_lshl_b32 s%d, s%d, 2" % (sT1, sMT))))
        it.append(("s", lambda: e.op("s_add_u32 s%d, s%d, s%d" % (sT1, sT1, sW))))
        it.append(("s", lambda: e.op("s_mul_i32 s%d, s%d, %d" % (sT1, sT1, 32 * 26))))
        it.append(("s", lambda: e.op("v_mul_u32_u24 v10, 26, v%d" % vJ)))
        it.append(("s", lambda: e.op("v_and_b32 v10, -4, v10")))
        it.append(("v", lambda: e.vmem("buffer_load_dwordx4 %s, v10, %s, s%d offen" % (vr(vXW, 4), srd(S_XW), sT1), "xw0")))
        it.append(("v", lambda: e.vmem("buffer_load_dwordx3 %s, v10, %s, s%d offen offset:16" % (vr(vXW + 4, 3), srd(S_XW), sT1), "xw")))
        it.append(("s", lambda: e.op("s_lshl_b32 s%d, s%d, 3" % (sT2, sMT))))
        it.append(("s", lambda: e.op("v_mov_b32 v11, s%d" % sT2)))
        it.append(("v", lambda: e.vmem("buffer_load_dword v%d, v11, %s, 0 offen sc1" % (vCNT, srd(S_DBG)), "cnt")))
        return it

    LATE = late_items()
    late_steps = [44, 45, 46, 47]
    for k, s in enumerate(late_steps):
        late[s] = LATE[k * len(LATE) // len(late_steps):(k + 1) * len(LATE) // len(late_steps)]

    def b1_items():
        it = [("s", lambda: e.wait(v="b1"))]
        for i in range(16):
            a, ee = (i >> 2) & 1, 2 * (i & 3) + (i >> 3)
            src = vB1R + a * 8 + ee
            it.append(("s", lambda i=i, src=src: e.op("v_lshlrev_b32 v%d, 16, v%d" % (vB1F + i, src))))
            it.append(("s", lambda i=i, src=src: e.op("v_and_b32 v%d, s%d, v%d" % (vB1F + 16 + i, sHI, src))))
        return it
    B1I = b1_items()
    late[50] = B1I[:21]
    late[51] = B1I[21:]

    def exw(tau):
        return [("v", lambda k=k: e.lds("ds_write_b128 v%d, %s offset:%d" % (EXW[tau], ar(AACC + tau * 32 + 4 * k, 4), 1024 * k)))
                for k in range(8)]

    e.inloop = True
    e.x = o.x
    for s in range(NSTEP):
        e.c("---- step %d" % s)
        gaps = [[] for _ in range(8)]
        if s + 1 < NSTEP:
            pk = pack_items(s + 1)
            for g in range(5):
                gaps[g] += pk[g]
        rd = {1: 0, 3: 1, 5: 2, 7: 3}
        if s in BAR:
            def bar(s=s):
                stamp("pre%d" % s)
                e.wait(v=BAR[s][-1] if e.vtag[BAR[s][-1]] > e.vtag[BAR[s][0]] else BAR[s][0], l="all")
                e.op("s_barrier")
                stamp("post%d" % s)
            gaps[3].append(bar)
            gaps[3].append(lambda s=s: aread(s + 2, 0))
            gaps[4].append(lambda s=s: aread(s + 2, 1))
            gaps[5].append(lambda s=s: aread(s + 2, 2))
            gaps[7].append(lambda s=s: aread(s + 2, 3))
        elif s + 2 < NSTEP:
            for g, tau in rd.items():
                gaps[g].insert(0, lambda s=s, tau=tau: aread(s + 2, tau))
        nw = w1count(s)
        avail = 4 * (s + R + 1) - w1next[0]
        avail = min(avail, 4 * (s + R) + 4 - w1next[0])
        nw = max(0, min(nw, 4 * (s + R) - w1next[0] + 0))
        wi = w1_items(nw)
        assert w1next[0] >= min(NSTEP * 4, 4 * (s + 3)), ("W1 lead too small", s, w1next[0])
        di = dma_plan[s] + late.get(s, [])
        flex = []
        a, b = list(wi), list(di)
        while a or b:
            while a:
                it = a.pop(0)
                flex.append(it)
                if it[0] == "v":
                    break
            while b:
                it = b.pop(0)
                flex.append(it)
                if it[0] == "v":
                    break
        base = [len(g) + (1 if k in (1, 3, 5, 7) else 0) + (1 if (s + 2) // 13 == 2 and k in (1, 3, 5, 7) else 0)
                for k, g in enumerate(gaps)]
        free = [max(0, CAP - x) for x in base]
        tot = sum(free)
        g = 0
        n = len(flex)
        acc = 0
        placed = 0
        for k in range(8):
            acc += free[k]
            want = (n * acc + tot - 1) // tot if tot else n
            if k == 7:
                want = n
            while placed < want:
                gaps[k].append(flex[placed][1])
                placed += 1
        if s == NSTEP - 1:
            gaps[3] += [it[1] for it in exw(0)[:4]]
            gaps[4] += [it[1] for it in exw(0)[4:]]
            gaps[5] += [it[1] for it in exw(1)[:4]]
            gaps[6] += [it[1] for it in exw(1)[4:]]
            gaps[7] += [it[1] for it in exw(2)]
        for m in range(8):
            tau, t = m >> 1, m & 1
            if t == 0:
                e.wait(l="a%d_%d" % (s, tau))
            acc_r = ar(AACC + tau * 32 + t * 16, 16)
            e.op("v_mfma_f32_32x32x16_bf16 %s, %s, %s, %s" % (
                acc_r, vr(vPK + (s & 1) * 8 + t * 4, 4), ar(AFR + (s & 1) * 16 + tau * 4, 4), "0" if s == 0 else acc_r))
            for it in gaps[m]:
                it()
    e.inloop = False
    stamp("loop")
    vO = 48
    vX = vRAW
    assert vX + 96 <= top
    e.wait(l="all")
    e.op("s_barrier")
    stamp("exbar")
    for p in range(3):
        for k in range(8):
            e.lds("ds_read_b128 %s, v%d offset:%d" % (vr(vX + p * 32 + 4 * k, 4), vEXR, p * 8192 + k * 1024), "x%d_%d" % (p, k))
    for i in range(32):
        e.op("v_accvgpr_read_b32 v%d, a%d" % (vO + i, AACC + 96 + i))
    for p in range(3):
        for k in range(8):
            e.wait(l="x%d_%d" % (p, k))
            for hh in range(2):
                r = 4 * k + 2 * hh
                e.op("v_pk_add_f32 %s, %s, %s" % (vr(vO + r, 2), vr(vO + r, 2), vr(vX + p * 32 + r, 2)))
    for i in range(32):
        e.op("v_cvt_pk_bf16_f32 v%d, 0, v%d" % (vO + i, vO + i))
    for r in range(0, 32, 2):
        e.op("v_pk_add_f32 %s, %s, %s" % (vr(vO + r, 2), vr(vO + r, 2), vr(vB1F + r, 2)))
    for i in range(16):
        e.op("v_cvt_pk_bf16_f32 v%d, v%d, v%d" % (vO + i, vO + i, vO + 16 + i))
    for i in range(16):
        e.op("v_pk_max_i16 v%d, v%d, 0" % (vO + i, vO + i))
    e.wait(v="w2")
    e.op("v_mov_b32 v12, 0")
    for i in range(16):
        a, ee = (i >> 2) & 1, 2 * (i & 3) + (i >> 3)
        e.op("v_dot2_f32_bf16 v12, v%d, v%d, v12" % (vO + i, vW2 + a * 8 + ee))
    e.op("s_nop 2")
    e.op("v_mov_b32 v13, v12")
    e.op("s_nop 1")
    e.op("v_permlane32_swap_b32 v13, v12")
    e.op("v_add_f32 v12, v12, v13")
    stamp("epi")
    e.op("s_cmp_eq_u32 s%d, 0" % sNS)
    e.op("v_min_u32 v12, -2, v12")
    e.op("s_cbranch_scc1 L_final")
    e.vmem("buffer_store_dword v12, v%d, %s, 0 offen sc1" % (vSLOT, srd(S_WS)))
    stamp_out()
    e.op("s_endpgm")
    e.label("L_final")
    e.op("v_lshrrev_b32 v13, 5, v%d" % vLANE)
    e.op("v_lshl_add_u32 v13, v13, 11, v%d" % vSLOT)
    e.op("s_mov_b32 s%d, 0" % sT3)
    e.wait(v="cnt")
    e.label("L_cnt")
    e.op("v_readfirstlane_b32 s%d, v%d" % (sT0, vCNT))
    e.op("s_cmp_ge_u32 s%d, 8" % sT0)
    e.op("s_cbranch_scc1 L_poll")
    e.op("buffer_load_dword v%d, v11, %s, 0 offen sc1" % (vCNT, srd(S_DBG)))
    e.op("s_add_u32 s%d, s%d, 1" % (sT3, sT3))
    e.op("s_cmp_gt_u32 s%d, %d" % (sT3, o.maxpoll))
    e.op("s_waitcnt vmcnt(0)")
    e.op("s_cbranch_scc0 L_cnt")
    e.label("L_poll")
    for k in range(4):
        e.op("buffer_load_dword v%d, v13, %s, 0 offen offset:%d sc1" % (16 + k, srd(S_WS), 512 * k))
    e.op("s_add_u32 s%d, s%d, 1" % (sT3, sT3))
    e.op("v_and_b32 v14, 1, v%d" % vJ)
    e.op("v_lshlrev_b32 v14, 4, v14")
    for k in range(7):
        e.op("v_alignbit_b32 v%d, v%d, v%d, v14" % (24 + k, vXW + min(k + 1, 6), vXW + k))
    e.op("v_and_b32 v30, 0xffff, v30")
    e.op("s_and_b32 s%d, s%d, 0xffff" % (sWW + 6, sWW + 6))
    e.op("v_mov_b32 v15, 0")
    for k in range(7):
        e.op("v_dot2_f32_bf16 v15, v%d, s%d, v15" % (24 + k, sWW + k))
    e.op("s_lshl_b32 s%d, s%d, 16" % (sT1, sBW))
    e.op("s_lshl_b32 s%d, s%d, 16" % (sT2, sB2))
    e.op("s_nop 1")
    e.op("v_cvt_pk_bf16_f32 v15, 0, v15")
    e.op("v_add_f32 v15, s%d, v15" % sT1)
    e.op("v_cvt_pk_bf16_f32 v15, 0, v15")
    e.op("s_waitcnt vmcnt(0)")
    e.op("s_mov_b32 exec_hi, 0")
    e.op("v_mov_b32 v16, v12")
    e.op("s_mov_b32 exec_hi, -1")
    e.op("v_max_u32 v20, v16, v17")
    e.op("v_max3_u32 v20, v20, v18, v19")
    e.op("s_cmp_gt_u32 s%d, %d" % (sT3, o.maxpoll))
    e.op("v_cmp_eq_u32 vcc, -1, v20")
    e.op("s_cbranch_scc1 L_go")
    e.op("s_cbranch_vccnz L_poll")
    e.label("L_go")
    e.op("v_add_f32 v16, v16, v17")
    e.op("v_add_f32 v18, v18, v19")
    e.op("v_add_f32 v16, v16, v18")
    e.op("v_mov_b32 v17, v16")
    e.op("s_nop 1")
    e.op("v_permlane32_swap_b32 v17, v16")
    e.op("v_add_f32 v16, v16, v17")
    e.op("v_cvt_pk_bf16_f32 v16, 0, v16")
    e.op("v_add_f32 v16, s%d, v16" % sT2)
    e.op("v_cvt_pk_bf16_f32 v16, 0, v16")
    e.op("v_add_f32 v16, v15, v16")
    e.op("v_cvt_pk_bf16_f32 v16, 0, v16")
    e.op("v_mul_f32 v16, 0xbfb8aa3b, v16")
    e.op("v_exp_f32 v16, v16")
    e.op("s_nop 0")
    e.op("v_add_f32 v16, 1.0, v16")
    e.op("v_rcp_f32 v16, v16")
    e.op("s_lshl_b32 s%d, s%d, 2" % (sT1, sMT))
    e.op("s_add_u32 s%d, s%d, s%d" % (sT1, sT1, sW))
    e.op("s_lshl_b32 s%d, s%d, 6" % (sT1, sT1))
    e.op("v_cvt_pk_bf16_f32 v16, v16, v16")
    e.op("v_lshlrev_b32 v17, 1, v%d" % vJ)
    e.op("s_mov_b32 exec_hi, 0")
    e.op("buffer_store_short v16, v17, %s, s%d offen" % (srd(S_OUT), sT1))
    stamp_out()
    if o.stamp:
        print('stamps:', stamps)
    e.label("L_end")
    e.op("s_endpgm")

    txt = HEADER + "; @launch grid=(256,1,1) block=(256,1,1) lds=%d\n" % LDS_TOTAL
    txt += '.amdgcn_target "amdgcn-amd-amdhsa--gfx950"\n.text\n.globl %s_kernel\n.p2align 8\n.type %s_kernel,@function\n%s_kernel:\n' % (NAME, NAME, NAME)
    txt += "\n".join(e.L) + "\n"
    txt += """.section .rodata,"a"
.p2align 6
.amdhsa_kernel %s_kernel
  .amdhsa_next_free_vgpr 416
  .amdhsa_next_free_sgpr 102
  .amdhsa_accum_offset 256
  .amdhsa_group_segment_fixed_size 0
  .amdhsa_kernarg_size 96
  .amdhsa_user_sgpr_count 2
  .amdhsa_user_sgpr_kernarg_segment_ptr 1
  .amdhsa_system_sgpr_workgroup_id_x 1
.end_amdhsa_kernel
""" % NAME
    return txt


def main():
    ap = argparse.ArgumentParser()
    ap.add_argument("-o", default="cdna_kernels/%s.s" % NAME)
    ap.add_argument("--ring", type=int, default=12)
    ap.add_argument("--pre1", type=int, default=2)
    ap.add_argument("--pre2", type=int, default=5)
    ap.add_argument("--w1p0", type=int, default=6)
    ap.add_argument("--w1p1", type=int, default=3)
    ap.add_argument("--w1p2", type=int, default=5)
    ap.add_argument("--p1end", type=int, default=21)
    ap.add_argument("--p2end", type=int, default=32)
    ap.add_argument("--pair0", type=int, default=1)
    ap.add_argument("--prefetch", type=int, default=1)
    ap.add_argument("--nsmap", type=int, default=0)
    ap.add_argument("--maxpoll", type=int, default=200000)
    ap.add_argument("--x", type=int, default=0)
    ap.add_argument("--pfall", type=int, default=0)
    ap.add_argument("--delay", type=int, default=0)
    ap.add_argument("--stamp", type=int, default=0)
    ap.add_argument("--stampwg", type=int, default=0)
    o = ap.parse_args()
    open(o.o, "w").write(gen(o))


if __name__ == "__main__":
    main()
```

```python
import sys, argparse

NAME = "standalone__deep_cross_wide_deep__recsys"

HEADER = open("cdna_kernels/%s.s.ref" % NAME).read().split("; @launch")[0]

SLOT = 64512
SPARE = 163840 - 2 * SLOT
S1 = SPARE
S0 = SPARE + SLOT
Q3B = 0
IDXB = 0
EXB = SLOT
LDS_TOTAL = 163840

S_IDX, S_TAB, S_W1, S_XW, S_B1, S_W2, S_OUT, S_DBG, S_WS = 28, 32, 36, 40, 44, 48, 52, 56, 60
sW, sNS, sMT = 64, 65, 66
sW4 = 67
sS1 = 68
sSEL0, sSEL1 = 69, 70
sOFF = 71
sWW = 72
sBW, sB2 = 79, 80
sT0, sT1, sT2, sT3 = 81, 82, 83, 84
sWM, sWO, sWM15, sWO15 = 85, 86, 87, 88
sDO = 89
sHI = 90
sROT = 91
sSTAMP = 92

vTID, vLANE, vW1, vTAB, vJ, vSLOT, vEXW, vEXR = 0, 1, 2, 3, 4, 5, 6, 7
vT = 10
vADDR = 16
vPK = 72
vRAW = 88
vPF, vTAB64 = 255, 254
vXT = 248
AACC = 0
AFR = 128


def srd(n):
    return "s[%d:%d]" % (n, n + 3)


def vr(n, c=1):
    return "v%d" % n if c == 1 else "v[%d:%d]" % (n, n + c - 1)


def ar(n, c=1):
    return "a%d" % n if c == 1 else "a[%d:%d]" % (n, n + c - 1)


class E:
    def __init__(self):
        self.L = []
        self.vm = 0
        self.lg = 0
        self.vtag = {}
        self.ltag = {}
        self.vdone = 0
        self.ldone = 0
        self.last_m0 = False
        self.inloop = False
        self.x = 0

    def op(self, t):
        if self.inloop and ((self.x & 2 and t.startswith("v_perm")) or (self.x & 16 and t.startswith("v_permlane"))
                            or (self.x & 32 and t.startswith("v_perm_b32"))):
            return
        self.L.append("    " + t)
        self.last_m0 = t.split()[1].startswith("m0") if len(t.split()) > 1 and t.startswith("s_") else False

    def label(self, t):
        self.L.append(t + ":")

    def c(self, t):
        self.L.append("    ; " + t)

    def vmem(self, t, tag=None, count=True):
        if self.inloop and ((self.x & 1 and "s[36:39]" in t) or (self.x & 8 and t.endswith("lds"))):
            if tag is not None:
                self.vtag[tag] = self.vm
            return
        if t.endswith("lds") and self.last_m0:
            self.op("s_nop 0")
        self.op(t)
        if count:
            self.vm += 1
            if tag is not None:
                self.vtag[tag] = self.vm

    def lds(self, t, tag=None):
        if self.inloop and self.x & 4 and t.startswith("ds_read"):
            self.ltag[tag] = self.lg
            return
        self.op(t)
        self.lg += 1
        if tag is not None:
            self.ltag[tag] = self.lg

    def wait(self, v=None, l=None):
        parts = []
        if v is not None:
            idx = self.vm if v == "all" else self.vtag[v]
            if idx > self.vdone:
                n = min(self.vm - idx, 63)
                parts.append("vmcnt(%d)" % n)
                self.vdone = self.vm - n
        if l is not None:
            idx = self.lg if l == "all" else self.ltag[l]
            if idx > self.ldone:
                n = min(self.lg - idx, 15)
                parts.append("lgkmcnt(%d)" % n)
                self.ldone = self.lg - n
        if parts:
            self.op("s_waitcnt " + " ".join(parts))
            return True
        return False


NSTEP = 52


def gen(o):
    e = E()
    R = o.ring
    assert vRAW + 8 * R <= 256
    vB1F = 16
    vB1R = 48
    stamps = []
    SPAIRS = [92, 96, 98, 100, 4, 6, 8, 14, 16, 18, 22, 24, 26, 86]

    def stamp(name):
        if not o.stamp:
            return
        k = len(stamps)
        stamps.append(name)
        e.op("%s s[%d:%d]" % ("s_memrealtime" if o.rt else "s_memtime", SPAIRS[k], SPAIRS[k] + 1))

    def stamp_out():
        if not o.stamp:
            return
        e.op("s_memrealtime s[88:89]" if o.rt else "s_memtime s[88:89]")
        e.op("s_memrealtime s[68:69]")
        e.op("s_waitcnt lgkmcnt(0)")
        e.op("s_mov_b64 exec, -1")
        if o.stamp == 2:
            lab = "L_so%d" % len(e.L)
            e.op("s_lshl_b32 s70, s2, 2")
            e.op("s_add_u32 s70, s70, s%d" % sW)
            e.op("s_cmp_lg_u32 s70, %d" % (o.stampwg * 4))
            e.op("s_cbranch_scc1 " + lab)
            e.op("v_mov_b32 v16, 0")
            sel = [2, 4, 5, 11, 13]
            for k, i in enumerate(sel):
                e.op("s_sub_u32 s70, s%d, s%d" % (SPAIRS[i], SPAIRS[0]))
                e.op("v_writelane_b32 v16, s70, %d" % k)
            e.op("s_sub_u32 s70, s88, s%d" % SPAIRS[0])
            e.op("v_writelane_b32 v16, s70, 5")
            e.op("s_sub_u32 s70, s68, s94")
            e.op("v_writelane_b32 v16, s70, 6")
            e.op("v_writelane_b32 v16, s%d, 7" % sT3)
            e.op("v_lshlrev_b32 v17, 3, v%d" % vLANE)
            e.op("s_mov_b64 exec, 0xff")
            e.op("buffer_store_dword v16, v17, %s, 0 offen offset:4" % srd(S_DBG))
            e.label(lab)
            return
        e.op("v_mov_b32 v16, 0")
        for k in range(len(stamps)):
            e.op("v_writelane_b32 v16, s%d, %d" % (SPAIRS[k], k))
        e.op("v_writelane_b32 v16, s88, 16")
        e.op("v_writelane_b32 v16, s94, 17")
        e.op("v_writelane_b32 v16, s68, 18")
        e.op("v_writelane_b32 v16, s%d, 19" % sT3)
        e.op("s_getreg_b32 s70, hwreg(HW_REG_XCC_ID)")
        e.op("v_writelane_b32 v16, s70, 20")
        e.op("s_getreg_b32 s70, hwreg(HW_REG_HW_ID)")
        e.op("v_writelane_b32 v16, s70, 21")
        e.op("s_lshl_b32 s70, s2, 2")
        e.op("s_add_u32 s70, s70, s%d" % sW)
        e.op("s_lshl_b32 s70, s70, 7")
        e.op("s_add_u32 s70, s70, 0x40000")
        e.op("v_lshlrev_b32 v17, 2, v%d" % vLANE)
        e.op("s_mov_b32 exec_hi, 0")
        e.op("buffer_store_dword v16, v17, %s, s70 offen" % srd(S_WS))

    e.op("s_cmp_ge_u32 s2, 256")
    e.op("s_cbranch_scc1 L_end")
    e.op("s_load_dwordx16 s[4:19], s[0:1], 0")
    e.op("s_load_dwordx8 s[20:27], s[0:1], 64")
    stamp("start")
    if o.stamp:
        e.op("s_memrealtime s[94:95]")
    e.op("v_lshrrev_b32 v10, 6, v0")
    e.op("v_and_b32 v%d, 63, v0" % vLANE)
    e.op("v_readfirstlane_b32 s%d, v10" % sW)
    if o.nsmap == 0:
        e.op("s_and_b32 s%d, s2, 7" % sNS)
        e.op("s_lshr_b32 s%d, s2, 3" % sMT)
    else:
        e.op("s_lshr_b32 s%d, s2, 5" % sNS)
        e.op("s_and_b32 s%d, s2, 31" % sMT)
    e.op("v_and_b32 v%d, 31, v0" % vJ)
    e.op("s_mov_b32 s%d, %d" % (sS1, S1))
    e.op("s_mov_b32 s%d, 0x05040100" % sSEL0)
    e.op("s_mov_b32 s%d, 0x07060302" % sSEL1)
    e.op("s_mov_b32 s%d, 0xffff0000" % sHI)
    e.op("s_lshl_b32 s%d, s%d, 2" % (sW4, sW))
    e.op("s_lshl_b32 s%d, s%d, 10" % (sWM, sW))
    e.op("s_lshl_b32 s%d, s%d, 12" % (sWO, sW))
    e.op("s_min_u32 s%d, s%d, 2" % (sT0, sW))
    e.op("s_lshl_b32 s%d, s%d, 10" % (sWM15, sT0))
    e.op("s_lshl_b32 s%d, s%d, 12" % (sWO15, sT0))
    e.op("s_mul_i32 s%d, s%d, 13312" % (sT0, sMT))
    e.op("s_add_u32 s%d, s%d, s%d" % (sT0, sT0, sWO))
    e.op("v_lshlrev_b32 v11, 4, v%d" % vLANE)
    e.op("v_add_u32 v11, s%d, v11" % sT0)
    e.op("s_lshl_b32 s%d, s%d, 3" % (sT1, sMT))
    e.op("s_add_u32 s%d, s%d, s%d" % (sT1, sT1, sNS))
    e.op("s_lshl_b32 s%d, s%d, 9" % (sT1, sT1))
    e.op("s_lshl_b32 s%d, s%d, 7" % (sT2, sW))
    e.op("s_add_u32 s%d, s%d, s%d" % (sT1, sT1, sT2))
    e.op("v_lshlrev_b32 v%d, 2, v%d" % (vSLOT, vJ))
    e.op("v_add_u32 v%d, s%d, v%d" % (vSLOT, sT1, vSLOT))
    e.op("v_mov_b32 v%d, -1" % (vXT + 2))
    e.op("v_lshrrev_b32 v13, 4, v%d" % vLANE)
    e.op("v_sub_u32 v13, v%d, v13" % vLANE)
    e.op("v_and_b32 v13, 3, v13")
    e.op("v_lshlrev_b32 v13, 4, v13")
    e.op("v_lshrrev_b32 v14, 2, v%d" % vLANE)
    e.op("v_lshl_add_u32 v%d, v14, 8, v13" % vTAB)
    e.op("v_add_u32 v%d, 64, v%d" % (vTAB64, vTAB))
    e.op("v_lshrrev_b32 v13, 5, v%d" % vLANE)
    e.op("s_mov_b32 s%d, %d" % (sT2, 13 * 128 * 1024))
    e.op("v_mul_lo_u32 v13, v13, s%d" % sT2)
    e.op("v_bfe_u32 v14, v%d, 3, 2" % vLANE)
    e.op("v_lshl_add_u32 v13, v14, 11, v13")
    e.op("v_and_b32 v14, 7, v%d" % vLANE)
    e.op("v_lshl_add_u32 v13, v14, 4, v13")
    e.op("v_and_b32 v14, 15, v%d" % vLANE)
    e.op("s_mov_b32 vcc_lo, 0x00ff00ff")
    e.op("s_mov_b32 vcc_hi, 0x00ff00ff")
    e.op("s_lshl_b32 s%d, s%d, 13" % (sT2, sW))
    e.op("s_lshl_b32 s%d, s%d, 7" % (sT3, sNS))
    e.op("s_add_u32 s%d, s%d, s%d" % (sT2, sT2, sT3))
    e.op("v_add_u32 v%d, s%d, v13" % (vW1, sT2))
    e.op("s_lshl_b32 s%d, s%d, 2" % (sT2, sMT))
    e.op("s_add_u32 s%d, s%d, s%d" % (sT2, sT2, sW))
    e.op("s_mul_i32 s%d, s%d, 26" % (sT0, sT2))
    e.op("v_min_u32 v13, 25, v%d" % vLANE)
    e.op("v_add_u32 v13, s%d, v13" % sT0)
    e.op("v_lshlrev_b32 v13, 10, v13")
    e.op("v_add_u32 v%d, s%d, v13" % (vXT, sT3))
    e.op("s_lshl_b32 s%d, s%d, 11" % (sT0, sT2))
    e.op("v_lshlrev_b32 v14, 7, v14")
    e.op("v_add_u32 v%d, s%d, v14" % (vXT + 1, sT0))
    e.op("s_add_u32 m0, s%d, %d" % (sWO, IDXB))
    e.op("s_mov_b32 s%d, %d" % (S_IDX + 2, 4096 * 104))
    e.op("s_mov_b32 s%d, 0x00020000" % (S_IDX + 3))
    for (sd, nb) in [(S_WS, 0x100000), (S_TAB, 256000), (S_W1, 3328 * 1024), (S_XW, 4096 * 26), (S_B1, 1024),
                     (S_W2, 1024), (S_OUT, 8192), (S_DBG, 256)]:
        e.op("s_mov_b32 s%d, %d" % (sd + 2, nb))
        e.op("s_mov_b32 s%d, 0x00020000" % (sd + 3))
    e.op("s_and_b32 s%d, s%d, 63" % (sROT, sT2))
    e.op("s_waitcnt lgkmcnt(0)")

    def base(sd, sp):
        e.op("s_mov_b64 s[%d:%d], s[%d:%d]" % (sd, sd + 1, sp, sp + 1))
    base(S_IDX, 4)
    base(S_TAB, 6)
    for k in range(4):
        e.vmem("buffer_load_dwordx4 v11, %s, 0 offen offset:%d lds" % (srd(S_IDX), 1024 * k), "idx%d" % k)
    base(S_W1, 14)
    base(S_WS, 26)

    w1next = [0]
    cur_soff = [None]

    def w1_items(n):
        items = []
        for _ in range(n):
            k = w1next[0]
            if k >= NSTEP * 2:
                break
            w1next[0] += 1
            s, r = divmod(k, 2)
            q, f = divmod(s, 13)
            so = f * 131072 + q * 32768
            if cur_soff[0] != so:
                cur_soff[0] = so
                items.append(("s", lambda so=so: e.op("s_mov_b32 s%d, %d" % (sOFF, so))))
            dst = vRAW + (s % R) * 8 + r * 4
            items.append(("v", lambda dst=dst, r=r, s=s: e.vmem(
                "buffer_load_dwordx4 %s, v%d, %s, s%d offen offset:%d" % (vr(dst, 4), vW1, srd(S_W1), sOFF, r * 1024),
                "w1_%d_%d" % (s, r)), s))
        return items

    def run(items):
        for it in items:
            it[1]()

    def rot_unit(i):
        it = []
        if i:
            it.append(lambda: e.op("s_add_u32 s%d, s%d, 4" % (sROT, sROT)))
            it.append(lambda: e.op("s_and_b32 s%d, s%d, 63" % (sROT, sROT)))
        it.append(lambda: e.op("s_min_u32 s%d, s%d, 62" % (sT1, sROT)))
        it.append(lambda: e.op("s_lshl_b32 s%d, s%d, 10" % (sT2, sT1)))
        it.append(lambda: e.op("s_add_u32 m0, s%d, %d" % (sT2, S0)))
        it.append(lambda: e.op("s_lshl_b32 s%d, s%d, 12" % (sDO, sT1)))
        it.append(lambda: e.vmem("buffer_load_dwordx4 v%d, %s, s%d offen lds" % (vTAB, srd(S_TAB), sDO), "q0"))
        it.append(lambda: e.op("s_add_u32 m0, s%d, %d" % (sT2, S1)))
        it.append(lambda: e.vmem("buffer_load_dwordx4 v%d, %s, s%d offen lds" % (vTAB64, srd(S_TAB), sDO), "q1"))
        return it

    for f in rot_unit(0):
        f()
    def pfs():
        e.vmem("buffer_load_dword v%d, v%d, %s, 0 offen" % (vPF, vXT, srd(S_W1)))
        e.vmem("buffer_load_dword v%d, v%d, %s, 0 offen" % (vPF, vXT + 1, srd(S_TAB)))
        e.vmem("buffer_store_dword v%d, v%d, %s, 0 offen sc1" % (vXT + 2, vSLOT, srd(S_WS)), "marker")
    run(w1_items(2 * o.pre1))
    if o.prefetch == 1:
        pfs()
    e.op("s_load_dwordx4 s[%d:%d], s[10:11], 0" % (sWW, sWW + 3))
    e.op("s_load_dwordx2 s[%d:%d], s[10:11], 16" % (sWW + 4, sWW + 5))
    e.op("s_load_dword s%d, s[10:11], 24" % (sWW + 6))
    e.op("s_load_dword s%d, s[12:13], 0" % sBW)
    e.op("s_load_dword s%d, s[20:21], 0" % sB2)
    for i in range(1, o.n1):
        for f in rot_unit(i):
            f()
    for (sd, sp) in [(S_XW, 8), (S_B1, 16), (S_W2, 18), (S_OUT, 22), (S_DBG, 24)]:
        base(sd, sp)
    e.op("v_lshrrev_b32 v13, 5, v%d" % vLANE)
    e.op("v_lshl_add_u32 v13, v%d, 1, v13" % vJ)
    e.op("v_mul_u32_u24 v13, 52, v13")
    e.op("v_lshlrev_b32 v14, 4, v%d" % vLANE)
    EXW = [6, 8, 9]
    IDXA = [10, 11, 12, 13]
    for tau in range(4):
        e.op("s_add_u32 s%d, s%d, %d" % (sT1, sW, 1 + tau))
        e.op("s_and_b32 s%d, s%d, 3" % (sT1, sT1))
        e.op("s_mul_i32 s%d, s%d, 3328" % (sT0, sT1))
        e.op("s_mul_i32 s%d, s%d, 24576" % (sT3, sT1))
        e.op("s_add_u32 s%d, s%d, %d" % (sT3, sT3, EXB + (tau * 8192 if tau < 3 else 0)))
        if tau < 3:
            e.op("v_add_u32 v%d, s%d, v14" % (EXW[tau], sT3))
        else:
            e.op("v_add_u32 v%d, s%d, v14" % (vEXR, sT3))
        e.op("v_add_u32 v%d, s%d, v13" % (IDXA[tau], sT0))
    e.op("s_waitcnt lgkmcnt(0)")
    e.wait(v="idx3")
    stamp("idxw")
    e.op("s_barrier")
    if o.prefetch == 2:
        pfs()
    X = []
    for p in range(7):
        for tau in range(4):
            X.append(lambda tau=tau, p=p: e.lds("ds_read2_b32 %s, v%d offset0:%d offset1:%d" % (
                vr(vADDR + tau * 14 + 2 * p, 2), IDXA[tau], 2 * p, 2 * p + 1), "ix%d_%d" % (tau, p)))
    for p in range(7):
        for tau in range(4):
            X.append(lambda tau=tau, p=p: e.wait(l="ix%d_%d" % (tau, p)))
            for f in (2 * p, 2 * p + 1):
                if f >= 13:
                    continue
                a = vADDR + tau * 14 + f
                t = 14 + (f & 1)
                X.append(lambda a=a, t=t: e.op("v_add_lshl_u32 v%d, v%d, s%d, 2" % (t, a, sW4)))
                X.append(lambda a=a, t=t: e.op("v_and_or_b32 v%d, v%d, 48, s%d" % (t, t, sS1)))
                X.append(lambda a=a, t=t: e.op("v_lshl_add_u32 v%d, v%d, 6, v%d" % (a, a, t)))

    def pack_items(s):
        b = vRAW + (s % R) * 8
        pk = vPK + (s & 1) * 8
        A = [b + m for m in range(4)]
        B = [b + 4 + m for m in range(4)]
        xA0, xA2, xB0, xB2 = vXT, vXT + 1, vXT + 2, vXT + 3

        def cnd(d, y, x):
            return lambda: e.op("v_cndmask_b32_dpp v%d, v%d, v%d, vcc row_ror:8 row_mask:0xf bank_mask:0xf" % (d, y, x))

        def mv(y, x):
            return lambda: e.op("v_mov_b32_dpp v%d, v%d row_ror:8 row_mask:0xf bank_mask:0x3" % (y, x))

        def sw(x, y):
            return lambda: e.op("v_permlane16_swap_b32 v%d, v%d" % (x, y))
        PA = [xA0, A[1], xA2, A[3]]
        PB = [xB0, B[1], xB2, B[3]]

        def pm(p, t):
            return lambda: e.op("v_perm_b32 v%d, v%d, v%d, s%d" % (pk + t * 4 + p, PB[p], PA[p], sSEL1 if t else sSEL0))
        w = lambda: e.wait(v="w1_%d_1" % s)
        P = o.cperm
        return [(0, w), (4, cnd(xA0, A[1], A[0])), (4, mv(A[1], A[0])), (4, cnd(xA2, A[3], A[2])),
                (4, mv(A[3], A[2])), (4, cnd(xB0, B[1], B[0])), (4, mv(B[1], B[0])),
                (4, cnd(xB2, B[3], B[2])), (4, mv(B[3], B[2])), (P, sw(xA0, xA2)), (P, sw(A[1], A[3])),
                (P, sw(xB0, xB2)), (P, sw(B[1], B[3])),
                (4, pm(0, 0)), (4, pm(2, 0)), (4, pm(1, 0)), (4, pm(3, 0)), (4, pm(0, 1)),
                (4, pm(2, 1)), (4, pm(1, 1)), (4, pm(3, 1))]

    def aread(s, tau):
        q, f = divmod(s, 13)
        off = {0: SLOT, 1: 0, 2: SLOT, 3: 0}[q]
        a = vADDR + tau * 14 + f
        e.lds("ds_read_b128 %s, v%d offset:%d" % (ar(AFR + (s & 1) * 16 + tau * 4, 4), a, off), "a%d_%d" % (s, tau))

    for it in pack_items(0):
        X.append(it[1])
    nd = 16 - o.n1
    done = 0
    for i in range(nd):
        for f in rot_unit(o.n1 + i):
            f()
        want = min(len(X), (len(X) * (i + 1) * 100) // (nd * o.xsp))
        while done < want:
            X[done]()
            done += 1
    stamp("dmaend")
    run(w1_items(2 * (o.pre2 - o.pre1)))
    while done < len(X):
        X[done]()
        done += 1
    stamp("xform")
    e.wait(v="q1")
    e.op("s_barrier")
    stamp("q0")
    for s in (0, 1):
        for tau in range(4):
            aread(s, tau)
    e.op("s_lshl_b32 s%d, s%d, 3" % (sT1, sMT))
    e.op("v_mov_b32 v11, s%d" % sT1)
    e.op("s_cmp_lg_u32 s%d, 0" % sW)
    e.op("s_cbranch_scc1 L_nosig")
    e.op("v_mov_b32 v15, 1")
    e.op("s_mov_b64 exec, 1")
    e.vmem("buffer_atomic_add v15, v11, %s, 0 offen sc1" % srd(S_DBG), count=False)
    e.op("s_mov_b64 exec, -1")
    e.label("L_nosig")

    def dma_items(i, lb, qo, tag):
        m, oo = (sWM15, sWO15) if i == 15 else (sWM, sWO)
        return [("s", lambda: e.op("s_add_u32 m0, s%d, %d" % (m, lb + i * 4096))),
                ("s", lambda: e.op("s_add_u32 s%d, s%d, %d" % (sDO, oo, i * 16384 + (qo & 128)))),
                ("v", lambda: e.vmem("buffer_load_dwordx4 v%d, %s, s%d offen lds" % (vTAB64 if qo & 64 else vTAB, srd(S_TAB), sDO), tag))]

    def dma_second(i, lb, qo, tag):
        return [("s", lambda: e.op("s_add_u32 m0, s%d, %d" % (sWM, lb + i * 4096))),
                ("v", lambda: e.vmem("buffer_load_dwordx4 v%d, %s, s%d offen lds" % (vTAB64 if qo & 64 else vTAB, srd(S_TAB), sDO), tag), 1)]

    dma_plan = {s: [] for s in range(NSTEP)}
    units = []
    for i in range(8):
        units.append(dma_items(i, S0, 128, "q2") + dma_second(i, Q3B, 192, "q3a"))
        units.append(dma_items(8 + i, S0, 128, "q2"))
    st = list(range(12, o.p1end + 1))
    for k, u in enumerate(units):
        dma_plan[st[k * len(st) // len(units)]] += u
    st = list(range(25, o.p2end + 1))
    for k in range(8):
        dma_plan[st[k * len(st) // 8]] += dma_items(8 + k, Q3B, 192, "q3b")

    def w1count(s):
        if s < 11:
            return o.w1p0
        if s <= o.p1end:
            return o.w1p1
        return o.w1p2

    vW2 = vRAW + 0
    CAP = 5
    BAR = {11: ("q1",), 24: ("q2", "q3a"), 37: ("q3b",)}
    late = {}

    top = max(vRAW + 8 * R, vRAW + 96)
    assert top + 16 + 16 + 8 + 2 <= 254, "no room for late operands"
    vB1R = top
    vW2 = top + 16
    vXW = top + 32
    vCNT = top + 40
    vLA = top + 41

    def late_items():
        it = []
        it.append(("s", lambda: e.op("v_lshrrev_b32 v%d, 5, v%d" % (vLA, vLANE))))
        it.append(("s", lambda: e.op("v_lshlrev_b32 v%d, 6, v%d" % (vLA, vLA))))
        it.append(("s", lambda: e.op("s_lshl_b32 s%d, s%d, 7" % (sT0, sNS))))
        for k, off in enumerate((0, 16, 32, 48)):
            it.append(("v", lambda k=k, off=off: e.vmem("buffer_load_dwordx4 %s, v%d, %s, s%d offen offset:%d" % (
                vr(vB1R + 4 * k, 4), vLA, srd(S_B1), sT0, off), "b1")))
        for k, off in enumerate((0, 16, 32, 48)):
            it.append(("v", lambda k=k, off=off: e.vmem("buffer_load_dwordx4 %s, v%d, %s, s%d offen offset:%d" % (
                vr(vW2 + 4 * k, 4), vLA, srd(S_W2), sT0, off), "w2")))
        it.append(("s", lambda: e.op("s_lshl_b32 s%d, s%d, 2" % (sT1, sMT))))
        it.append(("s", lambda: e.op("s_add_u32 s%d, s%d, s%d" % (sT1, sT1, sW))))
        it.append(("s", lambda: e.op("s_mul_i32 s%d, s%d, %d" % (sT1, sT1, 32 * 26))))
        it.append(("s", lambda: e.op("v_mul_u32_u24 v10, 26, v%d" % vJ)))
        it.append(("s", lambda: e.op("v_and_b32 v10, -4, v10")))
        it.append(("v", lambda: e.vmem("buffer_load_dwordx4 %s, v10, %s, s%d offen" % (vr(vXW, 4), srd(S_XW), sT1), "xw0")))
        it.append(("v", lambda: e.vmem("buffer_load_dwordx3 %s, v10, %s, s%d offen offset:16" % (vr(vXW + 4, 3), srd(S_XW), sT1), "xw")))
        return it

    LATE = late_items()
    late_steps = list(range(o.late0, o.late0 + 6))
    for k, s in enumerate(late_steps):
        late[s] = LATE[k * len(LATE) // len(late_steps):(k + 1) * len(LATE) // len(late_steps)]
    late[o.cnts] = [("v", lambda: e.vmem("buffer_load_dword v%d, v11, %s, 0 offen sc1" % (vCNT, srd(S_DBG)), "cnt"))]

    def exw(tau):
        return [("v", lambda k=k: e.lds("ds_write_b128 v%d, %s offset:%d" % (EXW[tau], ar(AACC + tau * 32 + 4 * k, 4), 1024 * k)))
                for k in range(8)]

    e.inloop = True
    e.x = o.x
    CV = o.cvm
    for s in range(NSTEP):
        e.c("---- step %d" % s)
        gaps = [[] for _ in range(8)]
        used = [0] * 8
        rd = {1: 0, 3: 1, 5: 2, 7: 3}

        def put(g, c, f):
            gaps[g].append(f)
            used[g] += c
        if s in BAR:
            def bar(s=s):
                stamp("pre%d" % s)
                e.wait(v=BAR[s][-1] if e.vtag[BAR[s][-1]] > e.vtag[BAR[s][0]] else BAR[s][0], l="all")
                e.op("s_barrier")
                stamp("post%d" % s)
            put(3, 8, bar)
            rd = {3: 0, 4: 1, 5: 2, 7: 3}
        if s + 2 < NSTEP:
            for g, tau in rd.items():
                put(g, o.cds, lambda s=s, tau=tau: aread(s + 2, tau))
        used[7] += 4
        if o.lw == 2:
            used[5] += 4
        pk = pack_items(s + 1)[1:] if s + 1 < NSTEP else []
        nw = w1count(s)
        nw = max(0, min(nw, 2 * (s + R) - w1next[0]))
        wi = w1_items(nw)
        assert w1next[0] >= min(NSTEP * 2, 2 * (s + 3)), ("W1 lead too small", s, w1next[0])
        di = dma_plan[s] + late.get(s, [])
        if 0 <= s + 3 - 39 < 13:
            for tau in range(4):
                a = vADDR + tau * 14 + (s + 3 - 39)
                di.append(("s", lambda a=a: e.op("v_subrev_u32 v%d, s%d, v%d" % (a, sS1, a))))
        flex = []
        a, b = list(wi), list(di)
        while a or b:
            while a:
                it = a.pop(0)
                flex.append(it)
                if it[0] == "v":
                    break
            nv = 0
            while b:
                it = b.pop(0)
                flex.append(it)
                if it[0] == "v" and not (len(b) >= 2 and b[1][0] == "v" and len(b[1]) > 2):
                    break
        flex = [(CV if it[0] == "v" else 4, it[1]) for it in flex]
        tp, tf = sum(c for c, _ in pk), sum(c for c, _ in flex)
        merged = []
        ip = jf = 0
        cp = cf = 0.0
        while ip < len(pk) or jf < len(flex):
            fp = cp / tp * 0.9 if tp else 2
            ff = cf / tf if tf else 2
            if ip < len(pk) and (jf >= len(flex) or fp <= ff):
                merged.append(pk[ip]); cp += pk[ip][0]; ip += 1
            else:
                merged.append(flex[jf]); cf += flex[jf][0]; jf += 1
        total = sum(used) + tp + tf
        cap = o.mincap
        while True:
            u = list(used)
            g = 0
            pl = []
            for (c, f) in merged:
                while g < 7 and u[g] + c > cap:
                    g += 1
                u[g] += c
                pl.append(g)
            if u[7] <= cap:
                break
            cap += 4
        for (c, f), g in zip(merged, pl):
            put(g, c, f)
        if o.verbose:
            print("step", s, "cost", total, used)
        if s == NSTEP - 1:
            gaps[3] += [it[1] for it in exw(0)[:4]]
            gaps[4] += [it[1] for it in exw(0)[4:]]
            gaps[5] += [it[1] for it in exw(1)[:4]]
            gaps[6] += [it[1] for it in exw(1)[4:]]
            gaps[7] += [it[1] for it in exw(2)]
        for m in range(8):
            tau, t = m >> 1, m & 1
            if m == 0:
                e.wait(v="w1_%d_1" % (s + 1) if s + 1 < NSTEP else None,
                       l="a%d_%d" % (s, 0 if s == 0 else (3 if o.lw == 1 else 2)))
            elif t == 0:
                e.wait(l="a%d_%d" % (s, tau))
            acc_r = ar(AACC + tau * 32 + t * 16, 16)
            e.op("v_mfma_f32_32x32x16_bf16 %s, %s, %s, %s" % (
                acc_r, vr(vPK + (s & 1) * 8 + t * 4, 4), ar(AFR + (s & 1) * 16 + tau * 4, 4), "0" if s == 0 else acc_r))
            for it in gaps[m]:
                it()
            if m == 7 and e.L[-1].strip().startswith("v_perm_b32"):
                e.op("s_nop 0")
    e.inloop = False
    stamp("loop")
    vO = 48
    vX = vRAW
    assert vX + 96 <= top
    e.wait(l="all")
    e.op("s_barrier")
    stamp("exbar")
    for p in range(3):
        for k in range(8):
            e.lds("ds_read_b128 %s, v%d offset:%d" % (vr(vX + p * 32 + 4 * k, 4), vEXR, p * 8192 + k * 1024), "x%d_%d" % (p, k))
    for i in range(32):
        e.op("v_accvgpr_read_b32 v%d, a%d" % (vO + i, AACC + 96 + i))
    e.wait(v="b1")
    for i in range(16):
        src = vB1R + 4 * (i & 3) + (i >> 2)
        e.op("v_lshlrev_b32 v%d, 16, v%d" % (vB1F + i, src))
        e.op("v_and_b32 v%d, s%d, v%d" % (vB1F + 16 + i, sHI, src))
    for p in range(3):
        for k in range(8):
            e.wait(l="x%d_%d" % (p, k))
            for hh in range(2):
                r = 4 * k + 2 * hh
                e.op("v_pk_add_f32 %s, %s, %s" % (vr(vO + r, 2), vr(vO + r, 2), vr(vX + p * 32 + r, 2)))
    for i in range(32):
        e.op("v_cvt_pk_bf16_f32 v%d, 0, v%d" % (vO + i, vO + i))
    for r in range(0, 32, 2):
        e.op("v_pk_add_f32 %s, %s, %s" % (vr(vO + r, 2), vr(vO + r, 2), vr(vB1F + r, 2)))
    for i in range(16):
        e.op("v_cvt_pk_bf16_f32 v%d, v%d, v%d" % (vO + i, vO + i, vO + 16 + i))
    for i in range(16):
        e.op("v_pk_max_i16 v%d, v%d, 0" % (vO + i, vO + i))
    e.wait(v="w2")
    e.op("v_mov_b32 v12, 0")
    for i in range(16):
        e.op("v_dot2_f32_bf16 v12, v%d, v%d, v12" % (vO + i, vW2 + 4 * (i & 3) + (i >> 2)))
    e.op("s_nop 2")
    e.op("v_mov_b32 v13, v12")
    e.op("s_nop 1")
    e.op("v_permlane32_swap_b32 v13, v12")
    e.op("v_add_f32 v12, v12, v13")
    stamp("epi")
    e.op("s_cmp_eq_u32 s%d, 0" % sNS)
    e.op("v_min_u32 v12, -2, v12")
    e.op("s_cbranch_scc1 L_final")
    e.vmem("buffer_store_dword v12, v%d, %s, 0 offen sc1" % (vSLOT, srd(S_WS)))
    stamp_out()
    e.op("s_endpgm")
    e.label("L_final")
    e.op("v_lshrrev_b32 v13, 5, v%d" % vLANE)
    e.op("v_lshl_add_u32 v13, v13, 11, v%d" % vSLOT)
    e.op("s_mov_b32 s%d, 0" % sT3)
    e.wait(v="cnt")
    e.label("L_cnt")
    e.op("v_readfirstlane_b32 s%d, v%d" % (sT0, vCNT))
    e.op("s_cmp_ge_u32 s%d, 8" % sT0)
    e.op("s_cbranch_scc1 L_poll")
    e.op("buffer_load_dword v%d, v11, %s, 0 offen sc1" % (vCNT, srd(S_DBG)))
    e.op("s_add_u32 s%d, s%d, 1" % (sT3, sT3))
    e.op("s_cmp_gt_u32 s%d, %d" % (sT3, o.maxpoll))
    e.op("s_waitcnt vmcnt(0)")
    e.op("s_cbranch_scc0 L_cnt")
    e.label("L_poll")
    for k in range(4):
        e.op("buffer_load_dword v%d, v13, %s, 0 offen offset:%d sc1" % (16 + k, srd(S_WS), 512 * k))
    e.op("s_add_u32 s%d, s%d, 1" % (sT3, sT3))
    e.op("v_and_b32 v14, 1, v%d" % vJ)
    e.op("v_lshlrev_b32 v14, 4, v14")
    for k in range(7):
        e.op("v_alignbit_b32 v%d, v%d, v%d, v14" % (24 + k, vXW + min(k + 1, 6), vXW + k))
    e.op("v_and_b32 v30, 0xffff, v30")
    e.op("s_and_b32 s%d, s%d, 0xffff" % (sWW + 6, sWW + 6))
    e.op("v_mov_b32 v15, 0")
    for k in range(7):
        e.op("v_dot2_f32_bf16 v15, v%d, s%d, v15" % (24 + k, sWW + k))
    e.op("s_lshl_b32 s%d, s%d, 16" % (sT1, sBW))
    e.op("s_lshl_b32 s%d, s%d, 16" % (sT2, sB2))
    e.op("s_nop 1")
    e.op("v_cvt_pk_bf16_f32 v15, 0, v15")
    e.op("v_add_f32 v15, s%d, v15" % sT1)
    e.op("v_cvt_pk_bf16_f32 v15, 0, v15")
    e.op("s_waitcnt vmcnt(0)")
    e.op("s_mov_b32 exec_hi, 0")
    e.op("v_mov_b32 v16, v12")
    e.op("s_mov_b32 exec_hi, -1")
    e.op("v_max_u32 v20, v16, v17")
    e.op("v_max3_u32 v20, v20, v18, v19")
    e.op("s_cmp_gt_u32 s%d, %d" % (sT3, o.maxpoll))
    e.op("v_cmp_eq_u32 vcc, -1, v20")
    e.op("s_cbranch_scc1 L_go")
    e.op("s_cbranch_vccnz L_poll")
    e.label("L_go")
    e.op("v_add_f32 v16, v16, v17")
    e.op("v_add_f32 v18, v18, v19")
    e.op("v_add_f32 v16, v16, v18")
    e.op("v_mov_b32 v17, v16")
    e.op("s_nop 1")
    e.op("v_permlane32_swap_b32 v17, v16")
    e.op("v_add_f32 v16, v16, v17")
    e.op("v_cvt_pk_bf16_f32 v16, 0, v16")
    e.op("v_add_f32 v16, s%d, v16" % sT2)
    e.op("v_cvt_pk_bf16_f32 v16, 0, v16")
    e.op("v_add_f32 v16, v15, v16")
    e.op("v_cvt_pk_bf16_f32 v16, 0, v16")
    e.op("v_mul_f32 v16, 0xbfb8aa3b, v16")
    e.op("v_exp_f32 v16, v16")
    e.op("s_nop 0")
    e.op("v_add_f32 v16, 1.0, v16")
    e.op("v_rcp_f32 v16, v16")
    e.op("s_lshl_b32 s%d, s%d, 2" % (sT1, sMT))
    e.op("s_add_u32 s%d, s%d, s%d" % (sT1, sT1, sW))
    e.op("s_lshl_b32 s%d, s%d, 6" % (sT1, sT1))
    e.op("v_cvt_pk_bf16_f32 v16, v16, v16")
    e.op("v_lshlrev_b32 v17, 1, v%d" % vJ)
    e.op("s_mov_b32 exec_hi, 0")
    e.op("buffer_store_short v16, v17, %s, s%d offen" % (srd(S_OUT), sT1))
    stamp_out()
    if o.stamp:
        print('stamps:', stamps)
    e.label("L_end")
    e.op("s_endpgm")

    txt = HEADER + "; @launch grid=(256,1,1) block=(256,1,1) lds=%d\n" % LDS_TOTAL
    txt += '.amdgcn_target "amdgcn-amd-amdhsa--gfx950"\n.text\n.globl %s_kernel\n.p2align 8\n.type %s_kernel,@function\n%s_kernel:\n' % (NAME, NAME, NAME)
    txt += "\n".join(e.L) + "\n"
    txt += """.section .rodata,"a"
.p2align 6
.amdhsa_kernel %s_kernel
  .amdhsa_next_free_vgpr 416
  .amdhsa_next_free_sgpr 102
  .amdhsa_accum_offset 256
  .amdhsa_group_segment_fixed_size 0
  .amdhsa_kernarg_size 96
  .amdhsa_user_sgpr_count 2
  .amdhsa_user_sgpr_kernarg_segment_ptr 1
  .amdhsa_system_sgpr_workgroup_id_x 1
.end_amdhsa_kernel
""" % NAME
    return txt


def main():
    ap = argparse.ArgumentParser()
    ap.add_argument("-o", default="cdna_kernels/%s.s" % NAME)
    ap.add_argument("--ring", type=int, default=12)
    ap.add_argument("--pre1", type=int, default=2)
    ap.add_argument("--pre2", type=int, default=5)
    ap.add_argument("--w1p0", type=int, default=3)
    ap.add_argument("--w1p1", type=int, default=1)
    ap.add_argument("--w1p2", type=int, default=3)
    ap.add_argument("--p1end", type=int, default=22)
    ap.add_argument("--p2end", type=int, default=32)
    ap.add_argument("--pair0", type=int, default=1)
    ap.add_argument("--prefetch", type=int, default=1)
    ap.add_argument("--nsmap", type=int, default=0)
    ap.add_argument("--maxpoll", type=int, default=200000)
    ap.add_argument("--x", type=int, default=0)
    ap.add_argument("--pfall", type=int, default=0)
    ap.add_argument("--delay", type=int, default=0)
    ap.add_argument("--stamp", type=int, default=0)
    ap.add_argument("--stampwg", type=int, default=0)
    ap.add_argument("--rt", type=int, default=0)
    ap.add_argument("--n1", type=int, default=2)
    ap.add_argument("--xsp", type=int, default=100)
    ap.add_argument("--cperm", type=int, default=8)
    ap.add_argument("--cvm", type=int, default=8)
    ap.add_argument("--cds", type=int, default=4)
    ap.add_argument("--lw", type=int, default=1)
    ap.add_argument("--late0", type=int, default=3)
    ap.add_argument("--cnts", type=int, default=46)
    ap.add_argument("--verbose", type=int, default=0)
    ap.add_argument("--mincap", type=int, default=16)
    o = ap.parse_args()
    open(o.o, "w").write(gen(o))


if __name__ == "__main__":
    main()
```

```python
import sys, argparse

NAME = "standalone__deep_cross_wide_deep__recsys"

HEADER = open("cdna_kernels/%s.s.ref" % NAME).read().split("; @launch")[0]

SLOT = 64512
SPARE = 163840 - 2 * SLOT
S1 = SPARE
S0 = SPARE + SLOT
Q3B = 0
IDXB = 0
EXB = SLOT
LDS_TOTAL = 163840

S_IDX, S_TAB, S_W1, S_XW, S_B1, S_W2, S_OUT, S_DBG, S_WS = 28, 32, 36, 40, 44, 48, 52, 56, 60
sW, sNS, sMT = 64, 65, 66
sW4 = 67
sS1 = 68
sSEL0, sSEL1 = 69, 70
sOFF = 71
sWW = 72
sBW, sB2 = 79, 80
sT0, sT1, sT2, sT3 = 81, 82, 83, 84
sWM, sWO, sWM15, sWO15 = 85, 86, 87, 88
sDO = 89
sHI = 90
sROT = 91
sSTAMP = 92

vTID, vLANE, vW1, vTAB, vJ, vSLOT, vEXW, vEXR = 0, 1, 2, 3, 4, 5, 6, 7
vT = 10
vADDR = 16
vPK = 72
vRAW = 88
vPF, vTAB64 = 255, 254
vXT = 248
AACC = 0
AFR = 128


def srd(n):
    return "s[%d:%d]" % (n, n + 3)


def vr(n, c=1):
    return "v%d" % n if c == 1 else "v[%d:%d]" % (n, n + c - 1)


def ar(n, c=1):
    return "a%d" % n if c == 1 else "a[%d:%d]" % (n, n + c - 1)


class E:
    def __init__(self):
        self.L = []
        self.vm = 0
        self.lg = 0
        self.vtag = {}
        self.ltag = {}
        self.vdone = 0
        self.ldone = 0
        self.last_m0 = False
        self.inloop = False
        self.x = 0

    def op(self, t):
        if self.inloop and ((self.x & 2 and t.startswith("v_perm")) or (self.x & 16 and t.startswith("v_permlane"))
                            or (self.x & 32 and t.startswith("v_perm_b32"))):
            return
        self.L.append("    " + t)
        self.last_m0 = t.split()[1].startswith("m0") if len(t.split()) > 1 and t.startswith("s_") else False

    def label(self, t):
        self.L.append(t + ":")

    def c(self, t):
        self.L.append("    ; " + t)

    def vmem(self, t, tag=None, count=True):
        if self.inloop and ((self.x & 1 and "s[36:39]" in t) or (self.x & 8 and t.endswith("lds"))):
            if tag is not None:
                self.vtag[tag] = self.vm
            return
        if t.endswith("lds") and self.last_m0:
            self.op("s_nop 0")
        self.op(t)
        if count:
            self.vm += 1
            if tag is not None:
                self.vtag[tag] = self.vm

    def lds(self, t, tag=None):
        if self.inloop and self.x & 4 and t.startswith("ds_read"):
            self.ltag[tag] = self.lg
            return
        self.op(t)
        self.lg += 1
        if tag is not None:
            self.ltag[tag] = self.lg

    def wait(self, v=None, l=None):
        parts = []
        if v is not None:
            idx = self.vm if v == "all" else self.vtag[v]
            if idx > self.vdone:
                n = min(self.vm - idx, 63)
                parts.append("vmcnt(%d)" % n)
                self.vdone = self.vm - n
        if l is not None:
            idx = self.lg if l == "all" else self.ltag[l]
            if idx > self.ldone:
                n = min(self.lg - idx, 15)
                parts.append("lgkmcnt(%d)" % n)
                self.ldone = self.lg - n
        if parts:
            self.op("s_waitcnt " + " ".join(parts))
            return True
        return False


NSTEP = 52


def gen(o):
    e = E()
    R = o.ring
    assert vRAW + 8 * R <= 256
    vB1F = 16
    vB1R = 48
    stamps = []
    SPAIRS = [92, 96, 98, 100, 4, 6, 8, 14, 16, 18, 22, 24, 26, 86]

    def stamp(name):
        if not o.stamp:
            return
        k = len(stamps)
        stamps.append(name)
        e.op("%s s[%d:%d]" % ("s_memrealtime" if o.rt else "s_memtime", SPAIRS[k], SPAIRS[k] + 1))

    def stamp_out():
        if not o.stamp:
            return
        e.op("s_memrealtime s[88:89]" if o.rt else "s_memtime s[88:89]")
        e.op("s_memrealtime s[68:69]")
        e.op("s_waitcnt lgkmcnt(0)")
        e.op("s_mov_b64 exec, -1")
        if o.stamp == 2:
            lab = "L_so%d" % len(e.L)
            e.op("s_lshl_b32 s70, s2, 2")
            e.op("s_add_u32 s70, s70, s%d" % sW)
            e.op("s_cmp_lg_u32 s70, %d" % (o.stampwg * 4))
            e.op("s_cbranch_scc1 " + lab)
            e.op("v_mov_b32 v16, 0")
            sel = [2, 4, 5, 11, 13]
            for k, i in enumerate(sel):
                e.op("s_sub_u32 s70, s%d, s%d" % (SPAIRS[i], SPAIRS[0]))
                e.op("v_writelane_b32 v16, s70, %d" % k)
            e.op("s_sub_u32 s70, s88, s%d" % SPAIRS[0])
            e.op("v_writelane_b32 v16, s70, 5")
            e.op("s_sub_u32 s70, s68, s94")
            e.op("v_writelane_b32 v16, s70, 6")
            e.op("v_writelane_b32 v16, s%d, 7" % sT3)
            e.op("v_lshlrev_b32 v17, 3, v%d" % vLANE)
            e.op("s_mov_b64 exec, 0xff")
            e.op("buffer_store_dword v16, v17, %s, 0 offen offset:4" % srd(S_DBG))
            e.label(lab)
            return
        e.op("v_mov_b32 v16, 0")
        for k in range(len(stamps)):
            e.op("v_writelane_b32 v16, s%d, %d" % (SPAIRS[k], k))
        e.op("v_writelane_b32 v16, s88, 16")
        e.op("v_writelane_b32 v16, s94, 17")
        e.op("v_writelane_b32 v16, s68, 18")
        e.op("v_writelane_b32 v16, s%d, 19" % sT3)
        e.op("s_getreg_b32 s70, hwreg(HW_REG_XCC_ID)")
        e.op("v_writelane_b32 v16, s70, 20")
        e.op("s_getreg_b32 s70, hwreg(HW_REG_HW_ID)")
        e.op("v_writelane_b32 v16, s70, 21")
        e.op("s_lshl_b32 s70, s2, 2")
        e.op("s_add_u32 s70, s70, s%d" % sW)
        e.op("s_lshl_b32 s70, s70, 7")
        e.op("s_add_u32 s70, s70, 0x40000")
        e.op("v_lshlrev_b32 v17, 2, v%d" % vLANE)
        e.op("s_mov_b32 exec_hi, 0")
        e.op("buffer_store_dword v16, v17, %s, s70 offen" % srd(S_WS))

    e.op("s_cmp_ge_u32 s2, 256")
    e.op("s_cbranch_scc1 L_end")
    e.op("s_load_dwordx16 s[4:19], s[0:1], 0")
    e.op("s_load_dwordx8 s[20:27], s[0:1], 64")
    stamp("start")
    if o.stamp:
        e.op("s_memrealtime s[94:95]")
    e.op("v_lshrrev_b32 v10, 6, v0")
    e.op("v_and_b32 v%d, 63, v0" % vLANE)
    e.op("v_readfirstlane_b32 s%d, v10" % sW)
    if o.nsmap == 0:
        e.op("s_and_b32 s%d, s2, 7" % sNS)
        e.op("s_lshr_b32 s%d, s2, 3" % sMT)
    else:
        e.op("s_lshr_b32 s%d, s2, 5" % sNS)
        e.op("s_and_b32 s%d, s2, 31" % sMT)
    e.op("v_and_b32 v%d, 31, v0" % vJ)
    e.op("s_mov_b32 s%d, %d" % (sS1, S1))
    e.op("s_mov_b32 s%d, 0x05040100" % sSEL0)
    e.op("s_mov_b32 s%d, 0x07060302" % sSEL1)
    e.op("s_mov_b32 s%d, 0xffff0000" % sHI)
    e.op("s_lshl_b32 s%d, s%d, 2" % (sW4, sW))
    e.op("s_lshl_b32 s%d, s%d, 10" % (sWM, sW))
    e.op("s_lshl_b32 s%d, s%d, 12" % (sWO, sW))
    e.op("s_min_u32 s%d, s%d, 2" % (sT0, sW))
    e.op("s_lshl_b32 s%d, s%d, 10" % (sWM15, sT0))
    e.op("s_lshl_b32 s%d, s%d, 12" % (sWO15, sT0))
    e.op("s_mul_i32 s%d, s%d, 13312" % (sT0, sMT))
    e.op("s_add_u32 s%d, s%d, s%d" % (sT0, sT0, sWO))
    e.op("v_lshlrev_b32 v11, 4, v%d" % vLANE)
    e.op("v_add_u32 v11, s%d, v11" % sT0)
    e.op("s_lshl_b32 s%d, s%d, 3" % (sT1, sMT))
    e.op("s_add_u32 s%d, s%d, s%d" % (sT1, sT1, sNS))
    e.op("s_lshl_b32 s%d, s%d, 9" % (sT1, sT1))
    e.op("s_lshl_b32 s%d, s%d, 7" % (sT2, sW))
    e.op("s_add_u32 s%d, s%d, s%d" % (sT1, sT1, sT2))
    e.op("v_lshlrev_b32 v%d, 2, v%d" % (vSLOT, vJ))
    e.op("v_add_u32 v%d, s%d, v%d" % (vSLOT, sT1, vSLOT))
    e.op("v_mov_b32 v%d, -1" % (vXT + 2))
    e.op("v_lshrrev_b32 v13, 4, v%d" % vLANE)
    e.op("v_sub_u32 v13, v%d, v13" % vLANE)
    e.op("v_and_b32 v13, 3, v13")
    e.op("v_lshlrev_b32 v13, 4, v13")
    e.op("v_lshrrev_b32 v14, 2, v%d" % vLANE)
    e.op("v_lshl_add_u32 v%d, v14, 8, v13" % vTAB)
    e.op("v_add_u32 v%d, 64, v%d" % (vTAB64, vTAB))
    if o.fl:
        e.op("v_lshrrev_b32 v14, 3, v%d" % vLANE)
        e.op("v_and_b32 v13, 7, v%d" % vLANE)
        e.op("v_lshlrev_b32 v13, 4, v13")
        e.op("v_lshl_add_u32 v%d, v14, 8, v13" % vTAB)
        e.op("v_add_u32 v%d, 2048, v%d" % (vTAB64, vTAB))
    e.op("v_lshrrev_b32 v13, 5, v%d" % vLANE)
    e.op("s_mov_b32 s%d, %d" % (sT2, 13 * 128 * 1024))
    e.op("v_mul_lo_u32 v13, v13, s%d" % sT2)
    e.op("v_bfe_u32 v14, v%d, 3, 2" % vLANE)
    e.op("v_lshl_add_u32 v13, v14, 11, v13")
    e.op("v_and_b32 v14, 7, v%d" % vLANE)
    e.op("v_lshl_add_u32 v13, v14, 4, v13")
    e.op("v_and_b32 v14, 15, v%d" % vLANE)
    e.op("s_mov_b32 vcc_lo, 0x00ff00ff")
    e.op("s_mov_b32 vcc_hi, 0x00ff00ff")
    e.op("s_lshl_b32 s%d, s%d, 13" % (sT2, sW))
    e.op("s_lshl_b32 s%d, s%d, 7" % (sT3, sNS))
    e.op("s_add_u32 s%d, s%d, s%d" % (sT2, sT2, sT3))
    e.op("v_add_u32 v%d, s%d, v13" % (vW1, sT2))
    e.op("s_lshl_b32 s%d, s%d, 2" % (sT2, sMT))
    e.op("s_add_u32 s%d, s%d, s%d" % (sT2, sT2, sW))
    e.op("s_mul_i32 s%d, s%d, 26" % (sT0, sT2))
    e.op("v_min_u32 v13, 25, v%d" % vLANE)
    e.op("v_add_u32 v13, s%d, v13" % sT0)
    e.op("v_lshlrev_b32 v13, 10, v13")
    e.op("v_add_u32 v%d, s%d, v13" % (252, sT3))
    e.op("s_lshl_b32 s%d, s%d, 11" % (sT0, sT2))
    e.op("v_lshlrev_b32 v14, 7, v14")
    e.op("v_add_u32 v%d, s%d, v14" % (253, sT0))
    e.op("s_add_u32 m0, s%d, %d" % (sWO, IDXB))
    e.op("s_mov_b32 s%d, %d" % (S_IDX + 2, 4096 * 104))
    e.op("s_mov_b32 s%d, 0x00020000" % (S_IDX + 3))
    for (sd, nb) in [(S_WS, 0x100000), (S_TAB, 256000), (S_W1, 3328 * 1024), (S_XW, 4096 * 26), (S_B1, 1024),
                     (S_W2, 1024), (S_OUT, 8192), (S_DBG, 256)]:
        e.op("s_mov_b32 s%d, %d" % (sd + 2, nb))
        e.op("s_mov_b32 s%d, 0x00020000" % (sd + 3))
    e.op("s_and_b32 s%d, s%d, 63" % (sROT, sT2))
    e.op("s_waitcnt lgkmcnt(0)")

    def base(sd, sp):
        e.op("s_mov_b64 s[%d:%d], s[%d:%d]" % (sd, sd + 1, sp, sp + 1))
    base(S_IDX, 4)
    base(S_TAB, 6)
    for k in range(4):
        e.vmem("buffer_load_dwordx4 v11, %s, 0 offen offset:%d lds" % (srd(S_IDX), 1024 * k), "idx%d" % k)
    base(S_W1, 14)
    base(S_WS, 26)

    w1next = [0]
    cur_soff = [None]

    def w1_items(n):
        items = []
        for _ in range(n):
            k = w1next[0]
            if k >= NSTEP * 2:
                break
            w1next[0] += 1
            s, r = divmod(k, 2)
            q, f = divmod(s, 13)
            so = f * 131072 + q * 32768
            if cur_soff[0] != so:
                cur_soff[0] = so
                items.append(("s", lambda so=so: e.op("s_mov_b32 s%d, %d" % (sOFF, so))))
            dst = vRAW + (s % R) * 8 + r * 4
            items.append(("v", lambda dst=dst, r=r, s=s: e.vmem(
                "buffer_load_dwordx4 %s, v%d, %s, s%d offen offset:%d" % (vr(dst, 4), vW1, srd(S_W1), sOFF, r * 1024),
                "w1_%d_%d" % (s, r)), s))
        return items

    def run(items):
        for it in items:
            it[1]()

    def rot_unit(i):
        it = []
        if i:
            it.append(lambda: e.op("s_add_u32 s%d, s%d, 4" % (sROT, sROT)))
            it.append(lambda: e.op("s_and_b32 s%d, s%d, 63" % (sROT, sROT)))
        it.append(lambda: e.op("s_min_u32 s%d, s%d, 62" % (sT1, sROT)))
        it.append(lambda: e.op("s_lshl_b32 s%d, s%d, 10" % (sT2, sT1)))
        it.append(lambda: e.op("s_add_u32 m0, s%d, %d" % (sT2, S0)))
        it.append(lambda: e.op("s_lshl_b32 s%d, s%d, 12" % (sDO, sT1)))
        it.append(lambda: e.vmem("buffer_load_dwordx4 v%d, %s, s%d offen lds" % (vTAB, srd(S_TAB), sDO), "q0"))
        it.append(lambda: e.op("s_add_u32 m0, s%d, %d" % (sT2, S1)))
        it.append(lambda: e.vmem("buffer_load_dwordx4 v%d, %s, s%d offen lds" % (vTAB64, srd(S_TAB), sDO), "q1"))
        return it

    for f in rot_unit(0):
        f()
    def pfs(m=3):
        if m & 1:
            e.vmem("buffer_load_dword v%d, v%d, %s, 0 offen" % (vPF, 252, srd(S_W1)))
        if m & 2:
            e.vmem("buffer_load_dword v%d, v%d, %s, 0 offen" % (vPF, 253, srd(S_TAB)))
    run(w1_items(2 * o.pre1))
    pfs(o.pfa)
    e.vmem("buffer_store_dword v%d, v%d, %s, 0 offen sc1" % (vXT + 2, vSLOT, srd(S_WS)), "marker")
    e.op("s_load_dwordx4 s[%d:%d], s[10:11], 0" % (sWW, sWW + 3))
    e.op("s_load_dwordx2 s[%d:%d], s[10:11], 16" % (sWW + 4, sWW + 5))
    e.op("s_load_dword s%d, s[10:11], 24" % (sWW + 6))
    e.op("s_load_dword s%d, s[12:13], 0" % sBW)
    e.op("s_load_dword s%d, s[20:21], 0" % sB2)
    for i in range(1, o.n1):
        for f in rot_unit(i):
            f()
    for (sd, sp) in [(S_XW, 8), (S_B1, 16), (S_W2, 18), (S_OUT, 22), (S_DBG, 24)]:
        base(sd, sp)
    e.op("v_lshrrev_b32 v13, 5, v%d" % vLANE)
    e.op("v_lshl_add_u32 v13, v%d, 1, v13" % vJ)
    e.op("v_mul_u32_u24 v13, 52, v13")
    e.op("v_lshlrev_b32 v14, 4, v%d" % vLANE)
    EXW = [6, 8, 9]
    IDXA = [10, 11, 12, 13]
    for tau in range(4):
        e.op("s_add_u32 s%d, s%d, %d" % (sT1, sW, 1 + tau))
        e.op("s_and_b32 s%d, s%d, 3" % (sT1, sT1))
        e.op("s_mul_i32 s%d, s%d, 3328" % (sT0, sT1))
        e.op("s_mul_i32 s%d, s%d, 24576" % (sT3, sT1))
        e.op("s_add_u32 s%d, s%d, %d" % (sT3, sT3, EXB + (tau * 8192 if tau < 3 else 0)))
        if tau < 3:
            e.op("v_add_u32 v%d, s%d, v14" % (EXW[tau], sT3))
        else:
            e.op("v_add_u32 v%d, s%d, v14" % (vEXR, sT3))
        e.op("v_add_u32 v%d, s%d, v13" % (IDXA[tau], sT0))
    e.op("s_waitcnt lgkmcnt(0)")
    e.wait(v="idx3")
    stamp("idxw")
    e.op("s_barrier")
    pfs(o.pfb)
    X = []
    for p in range(7):
        for tau in range(4):
            X.append(lambda tau=tau, p=p: e.lds("ds_read2_b32 %s, v%d offset0:%d offset1:%d" % (
                vr(vADDR + tau * 14 + 2 * p, 2), IDXA[tau], 2 * p, 2 * p + 1), "ix%d_%d" % (tau, p)))
    for p in range(7):
        for tau in range(4):
            X.append(lambda tau=tau, p=p: e.wait(l="ix%d_%d" % (tau, p)))
            for f in (2 * p, 2 * p + 1):
                if f >= 13:
                    continue
                a = vADDR + tau * 14 + f
                t = 14 + (f & 1)
                X.append(lambda a=a, t=t: e.op("v_add_lshl_u32 v%d, v%d, s%d, 2" % (t, a, sW4)))
                X.append(lambda a=a, t=t: e.op("v_and_or_b32 v%d, v%d, 48, s%d" % (t, t, sS1)))
                X.append(lambda a=a, t=t: e.op("v_lshl_add_u32 v%d, v%d, 6, v%d" % (a, a, t)))

    T = o.tail
    ST = NSTEP - T
    PAIRS = [(s, tau) for s in range(ST) for tau in range(4)] + [(s, tau) for tau in range(4) for s in range(ST, NSTEP)]

    def pkloc(s):
        return vPK + (s & 1) * 8 if (s <= 40 or not T) else vRAW + ((s - 1) % R) * 8

    def pack_items(s):
        b = vRAW + (s % R) * 8
        pk = pkloc(s)
        A = [b + m for m in range(4)]
        B = [b + 4 + m for m in range(4)]
        xA0, xA2, xB0, xB2 = vXT, vXT + 1, vXT + 2, vXT + 3

        def cnd(d, y, x):
            return lambda: e.op("v_cndmask_b32_dpp v%d, v%d, v%d, vcc row_ror:8 row_mask:0xf bank_mask:0xf" % (d, y, x))

        def mv(y, x):
            return lambda: e.op("v_mov_b32_dpp v%d, v%d row_ror:8 row_mask:0xf bank_mask:0x3" % (y, x))

        def sw(x, y):
            return lambda: e.op("v_permlane16_swap_b32 v%d, v%d" % (x, y))
        PA = [xA0, A[1], xA2, A[3]]
        PB = [xB0, B[1], xB2, B[3]]

        def pm(p, t):
            return lambda: e.op("v_perm_b32 v%d, v%d, v%d, s%d" % (pk + t * 4 + p, PB[p], PA[p], sSEL1 if t else sSEL0))
        w = lambda: e.wait(v="w1_%d_1" % s)
        P = o.cperm
        return [(0, w), (4, cnd(xA0, A[1], A[0])), (4, mv(A[1], A[0])), (4, cnd(xA2, A[3], A[2])),
                (4, mv(A[3], A[2])), (4, cnd(xB0, B[1], B[0])), (4, mv(B[1], B[0])),
                (4, cnd(xB2, B[3], B[2])), (4, mv(B[3], B[2])), (P, sw(xA0, xA2)), (P, sw(A[1], A[3])),
                (P, sw(xB0, xB2)), (P, sw(B[1], B[3])),
                (4, pm(0, 0)), (4, pm(2, 0)), (4, pm(1, 0)), (4, pm(3, 0)), (4, pm(0, 1)),
                (4, pm(2, 1)), (4, pm(1, 1)), (4, pm(3, 1))]

    rebased = set()
    rdone = [0]

    def aread(n):
        s, tau = PAIRS[n]
        q, f = divmod(s, 13)
        off = {0: SLOT, 1: 0, 2: SLOT, 3: 0}[q]
        a = vADDR + tau * 14 + f
        assert (a in rebased) == (q == 3), ("rebase order", n)
        rdone[0] = n + 1
        e.lds("ds_read_b128 %s, v%d offset:%d" % (ar(AFR + (n % 32) * 4, 4), a, off), "a%d" % n)

    for it in pack_items(0):
        X.append(it[1])
    nd = 16 - o.n1
    done = 0
    for i in range(nd):
        for f in rot_unit(o.n1 + i):
            f()
        want = min(len(X), (len(X) * (i + 1) * 100) // (nd * o.xsp))
        while done < want:
            X[done]()
            done += 1
    stamp("dmaend")
    pfs(o.pfc)
    run(w1_items(2 * (o.pre2 - o.pre1)))
    while done < len(X):
        X[done]()
        done += 1
    stamp("xform")
    e.wait(v="q1")
    e.op("s_barrier")
    stamp("q0")
    for n in range(8):
        aread(n)
    e.op("s_lshl_b32 s%d, s%d, 3" % (sT1, sMT))
    e.op("v_mov_b32 v11, s%d" % sT1)
    e.op("s_cmp_lg_u32 s%d, 0" % sW)
    e.op("s_cbranch_scc1 L_nosig")
    e.op("v_mov_b32 v15, 1")
    e.op("s_mov_b64 exec, 1")
    e.vmem("buffer_atomic_add v15, v11, %s, 0 offen sc1" % srd(S_DBG), count=False)
    e.op("s_mov_b64 exec, -1")
    e.label("L_nosig")

    def dma_items(i, lb, qo, tag):
        m, oo = (sWM15, sWO15) if i == 15 else (sWM, sWO)
        return [("s", lambda: e.op("s_add_u32 m0, s%d, %d" % (m, lb + i * 4096))),
                ("s", lambda: e.op("s_add_u32 s%d, s%d, %d" % (sDO, oo, i * 16384 + (qo & 128)))),
                ("v", lambda: e.vmem("buffer_load_dwordx4 v%d, %s, s%d offen lds" % (vTAB64 if qo & 64 else vTAB, srd(S_TAB), sDO), tag))]

    def dma_second(i, lb, qo, tag):
        return [("s", lambda: e.op("s_add_u32 m0, s%d, %d" % (sWM, lb + i * 4096))),
                ("v", lambda: e.vmem("buffer_load_dwordx4 v%d, %s, s%d offen lds" % (vTAB64 if qo & 64 else vTAB, srd(S_TAB), sDO), tag), 1)]

    dma_plan = {s: [] for s in range(NSTEP)}
    units = []
    for i in range(8):
        units.append(dma_items(i, S0, 128, "q2") + dma_second(i, Q3B, 192, "q3a"))
        units.append(dma_items(8 + i, S0, 128, "q2"))
    st = list(range(12, o.p1end + 1))
    for k, u in enumerate(units):
        dma_plan[st[k * len(st) // len(units)]] += u
    st = list(range(25, o.p2end + 1))
    for k in range(8):
        dma_plan[st[k * len(st) // 8]] += dma_items(8 + k, Q3B, 192, "q3b")

    def w1count(s):
        if s < 11:
            return o.w1p0
        if s <= o.p1end:
            return o.w1p1
        return o.w1p2

    vW2 = vRAW + 0
    CAP = 5
    BAR = {11: ("q1",), 24: ("q2", "q3a"), 37: ("q3b",)}
    late = {}

    top = max(vRAW + 8 * R, vRAW + 96)
    assert top + 16 + 16 + 8 + 2 <= 254, "no room for late operands"
    vB1R = top
    vW2 = top + 16
    vXW = top + 32
    vCNT = top + 40
    vLA = top + 41

    def late_items():
        it = []
        it.append(("s", lambda: e.op("v_lshrrev_b32 v%d, 5, v%d" % (vLA, vLANE))))
        it.append(("s", lambda: e.op("v_lshlrev_b32 v%d, 6, v%d" % (vLA, vLA))))
        it.append(("s", lambda: e.op("s_lshl_b32 s%d, s%d, 7" % (sT0, sNS))))
        for k, off in enumerate((0, 16, 32, 48)):
            it.append(("v", lambda k=k, off=off: e.vmem("buffer_load_dwordx4 %s, v%d, %s, s%d offen offset:%d" % (
                vr(vB1R + 4 * k, 4), vLA, srd(S_B1), sT0, off), "b1")))
        for k, off in enumerate((0, 16, 32, 48)):
            it.append(("v", lambda k=k, off=off: e.vmem("buffer_load_dwordx4 %s, v%d, %s, s%d offen offset:%d" % (
                vr(vW2 + 4 * k, 4), vLA, srd(S_W2), sT0, off), "w2")))
        it.append(("s", lambda: e.op("s_lshl_b32 s%d, s%d, 2" % (sT1, sMT))))
        it.append(("s", lambda: e.op("s_add_u32 s%d, s%d, s%d" % (sT1, sT1, sW))))
        it.append(("s", lambda: e.op("s_mul_i32 s%d, s%d, %d" % (sT1, sT1, 32 * 26))))
        it.append(("s", lambda: e.op("v_mul_u32_u24 v10, 26, v%d" % vJ)))
        it.append(("s", lambda: e.op("v_and_b32 v10, -4, v10")))
        it.append(("v", lambda: e.vmem("buffer_load_dwordx4 %s, v10, %s, s%d offen" % (vr(vXW, 4), srd(S_XW), sT1), "xw0")))
        it.append(("v", lambda: e.vmem("buffer_load_dwordx3 %s, v10, %s, s%d offen offset:16" % (vr(vXW + 4, 3), srd(S_XW), sT1), "xw")))
        return it

    LATE = late_items()
    late_steps = list(range(o.late0, o.late0 + 6))
    for k, s in enumerate(late_steps):
        late[s] = LATE[k * len(LATE) // len(late_steps):(k + 1) * len(LATE) // len(late_steps)]
    late[o.cnts] = [("v", lambda: e.vmem("buffer_load_dword v%d, v11, %s, 0 offen sc1" % (vCNT, srd(S_DBG)), "cnt"))]

    assert T == 6 and R == 12
    vO = vRAW + 24
    vP0, vP1 = 16, 48
    B1F = [vRAW + 56 + i for i in range(16)] + [228 + i for i in range(16)]
    PKQ = []
    for s in range(1, NSTEP):
        it = pack_items(s)
        PKQ += [(it[1][0], (lambda w=it[0][1], f=it[1][1]: (w(), f())))] + it[2:]
    pkdone = [0]
    ramp = [int(x) for x in o.ramp.split(",")]
    assert sum(ramp) == 20 * (T - 2)

    tg = {g: [] for g in range(8 * T)}
    WG = [int(x) for x in o.wgaps.split(",")]
    for tau in range(3):
        for k in range(8):
            tg[2 * T * (tau + 1) + WG[k]].append((o.cwr, lambda tau=tau, k=k: e.lds("ds_write_b128 v%d, %s offset:%d" % (
                EXW[tau], ar(AACC + tau * 32 + 4 * k, 4), 1024 * k), "xw%d_%d" % (tau, k))))
    rdq = [8]
    XR = {}
    for x in o.xr.split(","):
        a, b = x.split(":")
        XR[int(a)] = int(b)

    def xrd(p, vp, k):
        assert rdone[0] == 4 * NSTEP
        e.lds("ds_read_b128 %s, v%d offset:%d" % (vr(vp + 4 * k, 4), vEXR, p * 8192 + k * 1024), "x%d_%d" % (p, k))

    def xadd(p, vp, k):
        e.wait(l="x%d_%d" % (p, k))
        for hh in range(2):
            r = 4 * k + 2 * hh
            e.op("v_pk_add_f32 %s, %s, %s" % (vr(vO + r, 2), vr(vO + r, 2), vr(vp + r, 2)))
    for p, vp in ((0, vP0), (1, vP1)):
        mb = 2 * T * (p + 2) + o.midbar
        tg[mb].insert(0, (8, lambda p=p: (e.wait(l="xw%d_7" % p), e.op("s_barrier"))))
        for k in range(8):
            g = mb + (k * o.xrs) // 8
            tg[g].append((o.cds, lambda p=p, vp=vp, k=k: xrd(p, vp, k)))
            if p == 0:
                assert g + o.xlat < 6 * T - 1
                tg[g + o.xlat].append((8, lambda k=k: xadd(0, vP0, k)))
    tflex = []
    for i in range(32):
        tflex.append((4, lambda i=i: e.op("v_accvgpr_read_b32 v%d, a%d" % (vO + i, AACC + 96 + i))))
    tflex.append((4, lambda: e.wait(v="b1")))
    for i in range(16):
        sr = vB1R + 4 * (i & 3) + (i >> 2)
        tflex.append((4, lambda i=i, sr=sr: e.op("v_lshlrev_b32 v%d, 16, v%d" % (B1F[i], sr))))
        tflex.append((4, lambda i=i, sr=sr: e.op("v_and_b32 v%d, s%d, v%d" % (B1F[16 + i], sHI, sr))))
    tfl = {ST: tflex[8:20], ST + 1: tflex[20:32] + tflex[:8], ST + 2: tflex[32:52], ST + 4: tflex[52:58], ST + 5: tflex[58:]}
    if o.tfm == 1:
        tfl = {ST: tflex[8:20], ST + 1: tflex[20:32] + tflex[:8]}
    if o.tfm == 2:
        tfl = {}

    e.inloop = True
    e.x = o.x
    CV = o.cvm
    for s in range(NSTEP):
        e.c("---- block %d" % s)
        gaps = [[] for _ in range(8)]
        used = [0] * 8
        rd = {1: 0, 3: 1, 5: 2, 7: 3}

        def put(g, c, f):
            gaps[g].append(f)
            used[g] += c
        if s in BAR:
            def bar(s=s):
                if not o.tst:
                    stamp("pre%d" % s)
                e.wait(v=BAR[s][-1] if e.vtag[BAR[s][-1]] > e.vtag[BAR[s][0]] else BAR[s][0], l="all")
                e.op("s_barrier")
                if not o.tst:
                    stamp("post%d" % s)
            put(3, 8, bar)
            rd = {3: 0, 4: 1, 5: 2, 7: 3}
        rg = sorted(rd.keys())
        if s in XR:
            rg = sorted(rg + [0, 4, 2, 6, 1, 5, 3, 7][:XR[s]])
        for g in rg:
            if rdq[0] < 4 * NSTEP:
                put(g, o.cds, lambda n=rdq[0]: aread(n))
                rdq[0] += 1
        if s >= ST:
            for g in range(8):
                for c, f in tg[8 * (s - ST) + g]:
                    put(g, c, f)
                if g & 1:
                    used[g] += 4
        else:
            used[7] += 4
        npk = 20
        if 0 <= s - (ST - len(ramp)) < len(ramp):
            npk += ramp[s - (ST - len(ramp))]
        pk = PKQ[pkdone[0]:pkdone[0] + npk]
        pkdone[0] += len(pk)
        lastpk = min(NSTEP - 1, (pkdone[0] + 19) // 20)
        nw = w1count(s)
        nw = max(0, min(nw, 2 * (s + R) - w1next[0]))
        wi = w1_items(nw)
        assert w1next[0] >= min(NSTEP * 2, 2 * (lastpk + 2)), ("W1 lead too small", s, w1next[0])
        di = dma_plan[s] + late.get(s, [])
        if 0 <= s - o.reb < 13:
            for tau in range(4):
                a = vADDR + tau * 14 + (s - o.reb)
                di.append(("s", lambda a=a: (rebased.add(a), e.op("v_subrev_u32 v%d, s%d, v%d" % (a, sS1, a)))))
        flex = []
        a, b = list(wi), list(di)
        while a or b:
            while a:
                it = a.pop(0)
                flex.append(it)
                if it[0] == "v":
                    break
            nv = 0
            while b:
                it = b.pop(0)
                flex.append(it)
                if it[0] == "v" and not (len(b) >= 2 and b[1][0] == "v" and len(b[1]) > 2):
                    break
        flex = [(CV if it[0] == "v" else 4, it[1]) for it in flex] + tfl.get(s, [])
        tp, tf = sum(c for c, _ in pk), sum(c for c, _ in flex)
        merged = []
        ip = jf = 0
        cp = cf = 0.0
        while ip < len(pk) or jf < len(flex):
            fp = cp / tp * 0.9 if tp else 2
            ff = cf / tf if tf else 2
            if ip < len(pk) and (jf >= len(flex) or fp <= ff):
                merged.append(pk[ip]); cp += pk[ip][0]; ip += 1
            else:
                merged.append(flex[jf]); cf += flex[jf][0]; jf += 1
        total = sum(used) + tp + tf
        cap = o.mincap
        while True:
            u = list(used)
            g = 0
            pl = []
            for (c, f) in merged:
                while g < 7 and u[g] + c > cap:
                    g += 1
                u[g] += c
                pl.append(g)
            if u[7] <= max(cap, used[7]):
                break
            cap += 4
        for (c, f), g in zip(merged, pl):
            put(g, c, f)
        if o.verbose:
            print("block", s, "cost", total, used)
        for m in range(8):
            n, t = 4 * s + (m >> 1), m & 1
            if o.tst and ("%d.%d" % (s, m)) in o.tst.split(","):
                stamp("b%d.%d" % (s, m))
            ps, tau = PAIRS[n]
            if m == 0 and s < ST:
                e.wait(v="w1_%d_1" % (s + 1), l="a%d" % (n + (0 if s == 0 else 3)))
            elif t == 0:
                e.wait(l="a%d" % n)
            acc_r = vr(vO + t * 16, 16) if (s >= ST and tau == 3) else ar(AACC + tau * 32 + t * 16, 16)
            e.op("v_mfma_f32_32x32x16_bf16 %s, %s, %s, %s" % (
                acc_r, vr(pkloc(ps) + t * 4, 4), ar(AFR + (n % 32) * 4, 4), "0" if s == 0 else acc_r))
            for it in gaps[m]:
                it()
            if m == 7 and e.L[-1].strip().startswith("v_perm_b32"):
                e.op("s_nop 0")
    e.inloop = False
    stamp("loop")
    e.wait(l="all")
    e.op("s_barrier")
    stamp("exbar")
    for k in range(8):
        xrd(2, vP0, k)
    e.op("s_nop 3")
    for k in range(8):
        xadd(1, vP1, k)
    for k in range(8):
        xadd(2, vP0, k)
    for i in range(32):
        e.op("v_cvt_pk_bf16_f32 v%d, 0, v%d" % (vO + i, vO + i))
    for r in range(0, 32, 2):
        e.op("v_pk_add_f32 %s, %s, %s" % (vr(vO + r, 2), vr(vO + r, 2), vr(B1F[r], 2)))
    for i in range(16):
        e.op("v_cvt_pk_bf16_f32 v%d, v%d, v%d" % (vO + i, vO + i, vO + 16 + i))
    for i in range(16):
        e.op("v_pk_max_i16 v%d, v%d, 0" % (vO + i, vO + i))
    e.wait(v="w2")
    e.op("v_mov_b32 v12, 0")
    for i in range(16):
        e.op("v_dot2_f32_bf16 v12, v%d, v%d, v12" % (vO + i, vW2 + 4 * (i & 3) + (i >> 2)))
    e.op("s_nop 2")
    e.op("v_mov_b32 v13, v12")
    e.op("s_nop 1")
    e.op("v_permlane32_swap_b32 v13, v12")
    e.op("v_add_f32 v12, v12, v13")
    stamp("epi")
    e.op("s_cmp_eq_u32 s%d, 0" % sNS)
    e.op("v_min_u32 v12, -2, v12")
    e.op("s_cbranch_scc1 L_final")
    e.vmem("buffer_store_dword v12, v%d, %s, 0 offen sc1" % (vSLOT, srd(S_WS)))
    stamp_out()
    e.op("s_endpgm")
    e.label("L_final")
    e.op("v_lshrrev_b32 v13, 5, v%d" % vLANE)
    e.op("v_lshl_add_u32 v13, v13, 11, v%d" % vSLOT)
    e.op("s_mov_b32 s%d, 0" % sT3)
    e.wait(v="cnt")
    e.label("L_cnt")
    e.op("v_readfirstlane_b32 s%d, v%d" % (sT0, vCNT))
    e.op("s_cmp_ge_u32 s%d, 8" % sT0)
    e.op("s_cbranch_scc1 L_poll")
    e.op("buffer_load_dword v%d, v11, %s, 0 offen sc1" % (vCNT, srd(S_DBG)))
    e.op("s_add_u32 s%d, s%d, 1" % (sT3, sT3))
    e.op("s_cmp_gt_u32 s%d, %d" % (sT3, o.maxpoll))
    e.op("s_waitcnt vmcnt(0)")
    e.op("s_cbranch_scc0 L_cnt")
    e.label("L_poll")
    for k in range(4):
        e.op("buffer_load_dword v%d, v13, %s, 0 offen offset:%d sc1" % (16 + k, srd(S_WS), 512 * k))
    e.op("s_add_u32 s%d, s%d, 1" % (sT3, sT3))
    e.op("v_and_b32 v14, 1, v%d" % vJ)
    e.op("v_lshlrev_b32 v14, 4, v14")
    for k in range(7):
        e.op("v_alignbit_b32 v%d, v%d, v%d, v14" % (24 + k, vXW + min(k + 1, 6), vXW + k))
    e.op("v_and_b32 v30, 0xffff, v30")
    e.op("s_and_b32 s%d, s%d, 0xffff" % (sWW + 6, sWW + 6))
    e.op("v_mov_b32 v15, 0")
    for k in range(7):
        e.op("v_dot2_f32_bf16 v15, v%d, s%d, v15" % (24 + k, sWW + k))
    e.op("s_lshl_b32 s%d, s%d, 16" % (sT1, sBW))
    e.op("s_lshl_b32 s%d, s%d, 16" % (sT2, sB2))
    e.op("s_nop 1")
    e.op("v_cvt_pk_bf16_f32 v15, 0, v15")
    e.op("v_add_f32 v15, s%d, v15" % sT1)
    e.op("v_cvt_pk_bf16_f32 v15, 0, v15")
    e.op("s_waitcnt vmcnt(0)")
    e.op("s_mov_b32 exec_hi, 0")
    e.op("v_mov_b32 v16, v12")
    e.op("s_mov_b32 exec_hi, -1")
    e.op("v_max_u32 v20, v16, v17")
    e.op("v_max3_u32 v20, v20, v18, v19")
    e.op("s_cmp_gt_u32 s%d, %d" % (sT3, o.maxpoll))
    e.op("v_cmp_eq_u32 vcc, -1, v20")
    e.op("s_cbranch_scc1 L_go")
    e.op("s_cbranch_vccnz L_poll")
    e.label("L_go")
    e.op("v_add_f32 v16, v16, v17")
    e.op("v_add_f32 v18, v18, v19")
    e.op("v_add_f32 v16, v16, v18")
    e.op("v_mov_b32 v17, v16")
    e.op("s_nop 1")
    e.op("v_permlane32_swap_b32 v17, v16")
    e.op("v_add_f32 v16, v16, v17")
    e.op("v_cvt_pk_bf16_f32 v16, 0, v16")
    e.op("v_add_f32 v16, s%d, v16" % sT2)
    e.op("v_cvt_pk_bf16_f32 v16, 0, v16")
    e.op("v_add_f32 v16, v15, v16")
    e.op("v_cvt_pk_bf16_f32 v16, 0, v16")
    e.op("v_mul_f32 v16, 0xbfb8aa3b, v16")
    e.op("v_exp_f32 v16, v16")
    e.op("s_nop 0")
    e.op("v_add_f32 v16, 1.0, v16")
    e.op("v_rcp_f32 v16, v16")
    e.op("s_lshl_b32 s%d, s%d, 2" % (sT1, sMT))
    e.op("s_add_u32 s%d, s%d, s%d" % (sT1, sT1, sW))
    e.op("s_lshl_b32 s%d, s%d, 6" % (sT1, sT1))
    e.op("v_cvt_pk_bf16_f32 v16, v16, v16")
    e.op("v_lshlrev_b32 v17, 1, v%d" % vJ)
    e.op("s_mov_b32 exec_hi, 0")
    e.op("buffer_store_short v16, v17, %s, s%d offen" % (srd(S_OUT), sT1))
    stamp_out()
    if o.stamp:
        print('stamps:', stamps)
    e.label("L_end")
    e.op("s_endpgm")

    txt = HEADER + "; @launch grid=(256,1,1) block=(256,1,1) lds=%d\n" % LDS_TOTAL
    txt += '.amdgcn_target "amdgcn-amd-amdhsa--gfx950"\n.text\n.globl %s_kernel\n.p2align 8\n.type %s_kernel,@function\n%s_kernel:\n' % (NAME, NAME, NAME)
    txt += "\n".join(e.L) + "\n"
    txt += """.section .rodata,"a"
.p2align 6
.amdhsa_kernel %s_kernel
  .amdhsa_next_free_vgpr 512
  .amdhsa_next_free_sgpr 102
  .amdhsa_accum_offset 256
  .amdhsa_group_segment_fixed_size 0
  .amdhsa_kernarg_size 96
  .amdhsa_user_sgpr_count 2
  .amdhsa_user_sgpr_kernarg_segment_ptr 1
  .amdhsa_system_sgpr_workgroup_id_x 1
.end_amdhsa_kernel
""" % NAME
    return txt


def main():
    ap = argparse.ArgumentParser()
    ap.add_argument("-o", default="cdna_kernels/%s.s" % NAME)
    ap.add_argument("--ring", type=int, default=12)
    ap.add_argument("--pre1", type=int, default=2)
    ap.add_argument("--pre2", type=int, default=5)
    ap.add_argument("--w1p0", type=int, default=3)
    ap.add_argument("--w1p1", type=int, default=1)
    ap.add_argument("--w1p2", type=int, default=3)
    ap.add_argument("--p1end", type=int, default=22)
    ap.add_argument("--p2end", type=int, default=32)
    ap.add_argument("--pair0", type=int, default=1)
    ap.add_argument("--prefetch", type=int, default=1)
    ap.add_argument("--nsmap", type=int, default=0)
    ap.add_argument("--maxpoll", type=int, default=200000)
    ap.add_argument("--x", type=int, default=0)
    ap.add_argument("--pfall", type=int, default=0)
    ap.add_argument("--delay", type=int, default=0)
    ap.add_argument("--stamp", type=int, default=0)
    ap.add_argument("--stampwg", type=int, default=0)
    ap.add_argument("--rt", type=int, default=0)
    ap.add_argument("--n1", type=int, default=2)
    ap.add_argument("--xsp", type=int, default=100)
    ap.add_argument("--cperm", type=int, default=8)
    ap.add_argument("--cvm", type=int, default=8)
    ap.add_argument("--cds", type=int, default=4)
    ap.add_argument("--lw", type=int, default=1)
    ap.add_argument("--late0", type=int, default=3)
    ap.add_argument("--cnts", type=int, default=46)
    ap.add_argument("--verbose", type=int, default=0)
    ap.add_argument("--mincap", type=int, default=16)
    ap.add_argument("--tail", type=int, default=6)
    ap.add_argument("--tst", default="")
    ap.add_argument("--pfa", type=int, default=3)
    ap.add_argument("--pfb", type=int, default=0)
    ap.add_argument("--pfc", type=int, default=0)
    ap.add_argument("--fl", type=int, default=0)
    ap.add_argument("--tfm", type=int, default=0)
    ap.add_argument("--ramp", default="4,4,4,4,4,12,12,12,12,12")
    ap.add_argument("--wgaps", default="1,2,4,5,7,8,10,11")
    ap.add_argument("--cwr", type=int, default=8)
    ap.add_argument("--midbar", type=int, default=2)
    ap.add_argument("--xrs", type=int, default=6)
    ap.add_argument("--xr", default="39:1,40:1,41:1,42:2,43:2,44:2,45:2,46:3")
    ap.add_argument("--xlat", type=int, default=3)
    ap.add_argument("--reb", type=int, default=29)
    o = ap.parse_args()
    open(o.o, "w").write(gen(o))


if __name__ == "__main__":
    main()
```

```python
import sys, argparse

NAME = "standalone__deep_cross_wide_deep__recsys"

HEADER = open("cdna_kernels/%s.s.ref" % NAME).read().split("; @launch")[0]

SLOT = 64512
SPARE = 163840 - 2 * SLOT
S1 = SPARE
S0 = SPARE + SLOT
Q3B = 0
IDXB = 0
EXB = SLOT
LDS_TOTAL = 163840

S_IDX, S_TAB, S_W1, S_XW, S_B1, S_W2, S_OUT, S_DBG, S_WS = 28, 32, 36, 40, 44, 48, 52, 56, 60
sW, sNS, sMT = 64, 65, 66
sW4 = 67
sS1 = 68
sSEL0, sSEL1 = 69, 70
sOFF = 71
sWW = 72
sBW, sB2 = 79, 80
sT0, sT1, sT2, sT3 = 81, 82, 83, 84
sWM, sWO, sWM15, sWO15 = 85, 86, 87, 88
sDO = 89
sHI = 90
sROT = 91
sSTAMP = 92

vTID, vLANE, vW1, vTAB, vJ, vSLOT, vEXW, vEXR = 0, 1, 2, 3, 4, 5, 6, 7
vT = 10
vADDR = 16
vPK = 72
vRAW = 88
vPF, vTAB64 = 255, 254
vXT = 248
AACC = 0
AFR = 128


def srd(n):
    return "s[%d:%d]" % (n, n + 3)


def vr(n, c=1):
    return "v%d" % n if c == 1 else "v[%d:%d]" % (n, n + c - 1)


def ar(n, c=1):
    return "a%d" % n if c == 1 else "a[%d:%d]" % (n, n + c - 1)


class E:
    def __init__(self):
        self.L = []
        self.vm = 0
        self.lg = 0
        self.vtag = {}
        self.ltag = {}
        self.vdone = 0
        self.ldone = 0
        self.last_m0 = False
        self.inloop = False
        self.x = 0

    def op(self, t):
        if self.inloop and ((self.x & 2 and t.startswith("v_perm")) or (self.x & 16 and t.startswith("v_permlane"))
                            or (self.x & 32 and t.startswith("v_perm_b32"))):
            return
        self.L.append("    " + t)
        self.last_m0 = t.split()[1].startswith("m0") if len(t.split()) > 1 and t.startswith("s_") else False

    def label(self, t):
        self.L.append(t + ":")

    def c(self, t):
        self.L.append("    ; " + t)

    def vmem(self, t, tag=None, count=True):
        if self.inloop and ((self.x & 1 and "s[36:39]" in t) or (self.x & 8 and t.endswith("lds"))):
            if tag is not None:
                self.vtag[tag] = self.vm
            return
        if t.endswith("lds") and self.last_m0:
            self.op("s_nop 0")
        self.op(t)
        if count:
            self.vm += 1
            if tag is not None:
                self.vtag[tag] = self.vm

    def lds(self, t, tag=None):
        if self.inloop and self.x & 4 and t.startswith("ds_read"):
            self.ltag[tag] = self.lg
            return
        self.op(t)
        self.lg += 1
        if tag is not None:
            self.ltag[tag] = self.lg

    def wait(self, v=None, l=None):
        parts = []
        if v is not None:
            idx = self.vm if v == "all" else self.vtag[v]
            if idx > self.vdone:
                n = min(self.vm - idx, 63)
                parts.append("vmcnt(%d)" % n)
                self.vdone = self.vm - n
        if l is not None:
            idx = self.lg if l == "all" else self.ltag[l]
            if idx > self.ldone:
                n = min(self.lg - idx, 15)
                parts.append("lgkmcnt(%d)" % n)
                self.ldone = self.lg - n
        if parts:
            self.op("s_waitcnt " + " ".join(parts))
            return True
        return False


NSTEP = 52


def gen(o):
    e = E()
    R = o.ring
    assert vRAW + 8 * R <= 256
    vB1F = 16
    vB1R = 48
    stamps = []
    SPAIRS = [92, 96, 98, 100, 4, 6, 8, 14, 16, 18, 22, 24, 26, 86]

    def stamp(name):
        if not o.stamp:
            return
        k = len(stamps)
        stamps.append(name)
        e.op("%s s[%d:%d]" % ("s_memrealtime" if o.rt else "s_memtime", SPAIRS[k], SPAIRS[k] + 1))

    def stamp_out():
        if not o.stamp:
            return
        e.op("s_memrealtime s[88:89]" if o.rt else "s_memtime s[88:89]")
        e.op("s_memrealtime s[68:69]")
        e.op("s_waitcnt lgkmcnt(0)")
        e.op("s_mov_b64 exec, -1")
        if o.stamp == 2:
            lab = "L_so%d" % len(e.L)
            e.op("s_lshl_b32 s70, s2, 2")
            e.op("s_add_u32 s70, s70, s%d" % sW)
            e.op("s_cmp_lg_u32 s70, %d" % (o.stampwg * 4))
            e.op("s_cbranch_scc1 " + lab)
            e.op("v_mov_b32 v16, 0")
            sel = [2, 4, 5, 11, 13]
            for k, i in enumerate(sel):
                e.op("s_sub_u32 s70, s%d, s%d" % (SPAIRS[i], SPAIRS[0]))
                e.op("v_writelane_b32 v16, s70, %d" % k)
            e.op("s_sub_u32 s70, s88, s%d" % SPAIRS[0])
            e.op("v_writelane_b32 v16, s70, 5")
            e.op("s_sub_u32 s70, s68, s94")
            e.op("v_writelane_b32 v16, s70, 6")
            e.op("v_writelane_b32 v16, s%d, 7" % sT3)
            e.op("v_lshlrev_b32 v17, 3, v%d" % vLANE)
            e.op("s_mov_b64 exec, 0xff")
            e.op("buffer_store_dword v16, v17, %s, 0 offen offset:4" % srd(S_DBG))
            e.label(lab)
            return
        e.op("v_mov_b32 v16, 0")
        for k in range(len(stamps)):
            e.op("v_writelane_b32 v16, s%d, %d" % (SPAIRS[k], k))
        e.op("v_writelane_b32 v16, s88, 16")
        e.op("v_writelane_b32 v16, s94, 17")
        e.op("v_writelane_b32 v16, s68, 18")
        e.op("v_writelane_b32 v16, s%d, 19" % sT3)
        e.op("s_getreg_b32 s70, hwreg(HW_REG_XCC_ID)")
        e.op("v_writelane_b32 v16, s70, 20")
        e.op("s_getreg_b32 s70, hwreg(HW_REG_HW_ID)")
        e.op("v_writelane_b32 v16, s70, 21")
        e.op("s_lshl_b32 s70, s2, 2")
        e.op("s_add_u32 s70, s70, s%d" % sW)
        e.op("s_lshl_b32 s70, s70, 7")
        e.op("s_add_u32 s70, s70, 0x40000")
        e.op("v_lshlrev_b32 v17, 2, v%d" % vLANE)
        e.op("s_mov_b32 exec_hi, 0")
        e.op("buffer_store_dword v16, v17, %s, s70 offen" % srd(S_WS))

    e.op("s_cmp_ge_u32 s2, 256")
    e.op("s_cbranch_scc1 L_end")
    e.op("s_load_dwordx16 s[4:19], s[0:1], 0")
    e.op("s_load_dwordx8 s[20:27], s[0:1], 64")
    stamp("start")
    if o.stamp:
        e.op("s_memrealtime s[94:95]")
    e.op("v_lshrrev_b32 v10, 6, v0")
    e.op("v_and_b32 v%d, 63, v0" % vLANE)
    e.op("v_readfirstlane_b32 s%d, v10" % sW)
    if o.nsmap == 0:
        e.op("s_and_b32 s%d, s2, 7" % sNS)
        e.op("s_lshr_b32 s%d, s2, 3" % sMT)
    else:
        e.op("s_lshr_b32 s%d, s2, 5" % sNS)
        e.op("s_and_b32 s%d, s2, 31" % sMT)
    e.op("v_and_b32 v%d, 31, v0" % vJ)
    e.op("s_mov_b32 s%d, %d" % (sS1, S1))
    e.op("s_mov_b32 s%d, 0x05040100" % sSEL0)
    e.op("s_mov_b32 s%d, 0x07060302" % sSEL1)
    e.op("s_mov_b32 s%d, 0xffff0000" % sHI)
    e.op("s_lshl_b32 s%d, s%d, 2" % (sW4, sW))
    e.op("s_lshl_b32 s%d, s%d, 10" % (sWM, sW))
    e.op("s_lshl_b32 s%d, s%d, 12" % (sWO, sW))
    e.op("s_min_u32 s%d, s%d, 2" % (sT0, sW))
    e.op("s_lshl_b32 s%d, s%d, 10" % (sWM15, sT0))
    e.op("s_lshl_b32 s%d, s%d, 12" % (sWO15, sT0))
    e.op("s_mul_i32 s%d, s%d, 13312" % (sT0, sMT))
    e.op("s_add_u32 s%d, s%d, s%d" % (sT0, sT0, sWO))
    e.op("v_lshlrev_b32 v11, 4, v%d" % vLANE)
    e.op("v_add_u32 v11, s%d, v11" % sT0)
    e.op("s_lshl_b32 s%d, s%d, 3" % (sT1, sMT))
    e.op("s_add_u32 s%d, s%d, s%d" % (sT1, sT1, sNS))
    e.op("s_lshl_b32 s%d, s%d, 9" % (sT1, sT1))
    e.op("s_lshl_b32 s%d, s%d, 7" % (sT2, sW))
    e.op("s_add_u32 s%d, s%d, s%d" % (sT1, sT1, sT2))
    e.op("v_lshlrev_b32 v%d, 2, v%d" % (vSLOT, vJ))
    e.op("v_add_u32 v%d, s%d, v%d" % (vSLOT, sT1, vSLOT))
    e.op("v_mov_b32 v%d, -1" % (vXT + 2))
    e.op("v_lshrrev_b32 v13, 4, v%d" % vLANE)
    e.op("v_sub_u32 v13, v%d, v13" % vLANE)
    e.op("v_and_b32 v13, 3, v13")
    e.op("v_lshlrev_b32 v13, 4, v13")
    e.op("v_lshrrev_b32 v14, 2, v%d" % vLANE)
    e.op("v_lshl_add_u32 v%d, v14, 8, v13" % vTAB)
    e.op("v_add_u32 v%d, 64, v%d" % (vTAB64, vTAB))
    if o.fl:
        e.op("v_lshrrev_b32 v14, 3, v%d" % vLANE)
        e.op("v_and_b32 v13, 7, v%d" % vLANE)
        e.op("v_lshlrev_b32 v13, 4, v13")
        e.op("v_lshl_add_u32 v%d, v14, 8, v13" % vTAB)
        e.op("v_add_u32 v%d, 2048, v%d" % (vTAB64, vTAB))
    e.op("v_lshrrev_b32 v13, 5, v%d" % vLANE)
    e.op("s_mov_b32 s%d, %d" % (sT2, 13 * 128 * 1024))
    e.op("v_mul_lo_u32 v13, v13, s%d" % sT2)
    e.op("v_bfe_u32 v14, v%d, 3, 2" % vLANE)
    e.op("v_lshl_add_u32 v13, v14, 11, v13")
    e.op("v_and_b32 v14, 7, v%d" % vLANE)
    e.op("v_lshl_add_u32 v13, v14, 4, v13")
    e.op("v_and_b32 v14, 15, v%d" % vLANE)
    e.op("s_mov_b32 vcc_lo, 0x00ff00ff")
    e.op("s_mov_b32 vcc_hi, 0x00ff00ff")
    e.op("s_lshl_b32 s%d, s%d, 13" % (sT2, sW))
    e.op("s_lshl_b32 s%d, s%d, 7" % (sT3, sNS))
    e.op("s_add_u32 s%d, s%d, s%d" % (sT2, sT2, sT3))
    e.op("v_add_u32 v%d, s%d, v13" % (vW1, sT2))
    e.op("s_lshl_b32 s%d, s%d, 2" % (sT2, sMT))
    e.op("s_add_u32 s%d, s%d, s%d" % (sT2, sT2, sW))
    e.op("s_mul_i32 s%d, s%d, 26" % (sT0, sT2))
    e.op("v_min_u32 v13, 25, v%d" % vLANE)
    e.op("v_add_u32 v13, s%d, v13" % sT0)
    e.op("v_lshlrev_b32 v13, 10, v13")
    e.op("v_add_u32 v%d, s%d, v13" % (252, sT3))
    e.op("s_lshl_b32 s%d, s%d, 11" % (sT0, sT2))
    e.op("v_lshlrev_b32 v14, 7, v14")
    e.op("v_add_u32 v%d, s%d, v14" % (253, sT0))
    if o.pfm:
        e.op("v_and_b32 v13, 7, v%d" % vLANE)
        e.op("s_lshl_b32 s%d, s%d, 3" % (sT0, sT2))
        e.op("v_add_u32 v13, s%d, v13" % sT0)
        e.op("v_lshlrev_b32 v253, 8, v13")
        e.op("v_lshrrev_b32 v14, 5, v13")
        e.op("v_and_b32 v13, 31, v13")
        e.op("v_lshlrev_b32 v14, 17, v14")
        e.op("v_lshl_add_u32 v13, v13, 10, v14")
        e.op("v_add_u32 v252, s%d, v13" % sT3)
        e.op("v_lshrrev_b32 v14, 3, v%d" % vLANE)
        kq = o.pfm
        if kq < 4:
            e.op("v_min_u32 v13, %d, v14" % (3 - kq))
            e.op("v_add_u32 v13, %d, v13" % kq)
            e.op("v_lshl_add_u32 v180, v13, 15, v252")
        if kq > 1:
            e.op("v_min_u32 v14, %d, v14" % (kq - 1))
            e.op("v_lshl_add_u32 v252, v14, 15, v252")
    if (o.pfa | o.pfb | o.pfc | o.pf0) & 4:
        e.op("s_getpc_b64 s[72:73]")
        e.op("Lpfc_pc:")
        e.op("v_and_b32 v182, 3, v%d" % vLANE)
        e.op("s_lshl_b32 s%d, s%d, 8" % (sT0, sT2))
        e.op("v_lshl_add_u32 v182, v182, 6, s%d" % sT0)
        e.op("v_min_u32 v182, Lpfc_end-Lpfc_pc-4, v182")
        e.op("v_mov_b32 v183, s73")
        e.op("v_add_co_u32_e64 v182, s[74:75], s72, v182")
        e.op("s_nop 1")
        e.op("v_addc_co_u32_e64 v183, s[74:75], 0, v183, s[74:75]")
        if o.pf0 & 4:
            e.vmem("global_load_dword v%d, v[182:183], off" % vPF)
    e.op("s_add_u32 m0, s%d, %d" % (sWO, IDXB))
    e.op("s_mov_b32 s%d, %d" % (S_IDX + 2, 4096 * 104))
    e.op("s_mov_b32 s%d, 0x00020000" % (S_IDX + 3))
    for (sd, nb) in [(S_WS, 0x100000), (S_TAB, 256000), (S_W1, 3328 * 1024), (S_XW, 4096 * 26), (S_B1, 1024),
                     (S_W2, 1024), (S_OUT, 8192), (S_DBG, 256)]:
        e.op("s_mov_b32 s%d, %d" % (sd + 2, nb))
        e.op("s_mov_b32 s%d, 0x00020000" % (sd + 3))
    e.op("s_and_b32 s%d, s%d, 63" % (sROT, sT2))
    e.op("s_waitcnt lgkmcnt(0)")

    def base(sd, sp):
        e.op("s_mov_b64 s[%d:%d], s[%d:%d]" % (sd, sd + 1, sp, sp + 1))
    base(S_IDX, 4)
    base(S_TAB, 6)
    for k in range(4):
        e.vmem("buffer_load_dwordx4 v11, %s, 0 offen offset:%d lds" % (srd(S_IDX), 1024 * k), "idx%d" % k)
    base(S_W1, 14)
    base(S_WS, 26)

    w1next = [0]
    cur_soff = [None]

    def w1_items(n):
        items = []
        for _ in range(n):
            k = w1next[0]
            if k >= NSTEP * 2:
                break
            w1next[0] += 1
            s, r = divmod(k, 2)
            q, f = divmod(s, 13)
            so = f * 131072 + q * 32768
            if cur_soff[0] != so:
                cur_soff[0] = so
                items.append(("s", lambda so=so: e.op("s_mov_b32 s%d, %d" % (sOFF, so))))
            dst = vRAW + (s % R) * 8 + r * 4
            items.append(("v", lambda dst=dst, r=r, s=s: e.vmem(
                "buffer_load_dwordx4 %s, v%d, %s, s%d offen offset:%d" % (vr(dst, 4), vW1, srd(S_W1), sOFF, r * 1024),
                "w1_%d_%d" % (s, r)), s))
        return items

    def run(items):
        for it in items:
            it[1]()

    def rot_unit(i):
        it = []
        if i:
            it.append(lambda: e.op("s_add_u32 s%d, s%d, 4" % (sROT, sROT)))
            it.append(lambda: e.op("s_and_b32 s%d, s%d, 63" % (sROT, sROT)))
        it.append(lambda: e.op("s_min_u32 s%d, s%d, 62" % (sT1, sROT)))
        it.append(lambda: e.op("s_lshl_b32 s%d, s%d, 10" % (sT2, sT1)))
        it.append(lambda: e.op("s_add_u32 m0, s%d, %d" % (sT2, S0)))
        it.append(lambda: e.op("s_lshl_b32 s%d, s%d, 12" % (sDO, sT1)))
        it.append(lambda: e.vmem("buffer_load_dwordx4 v%d, %s, s%d offen lds" % (vTAB, srd(S_TAB), sDO), "q0"))
        it.append(lambda: e.op("s_add_u32 m0, s%d, %d" % (sT2, S1)))
        it.append(lambda: e.vmem("buffer_load_dwordx4 v%d, %s, s%d offen lds" % (vTAB64, srd(S_TAB), sDO), "q1"))
        return it

    for f in rot_unit(0):
        f()
    def pfs(m=3):
        if m & 4:
            e.vmem("global_load_dword v%d, v[182:183], off" % vPF)
        if m & 1:
            e.vmem("buffer_load_dword v%d, v%d, %s, 0 offen" % (vPF, 252, srd(S_W1)))
        if m & 2:
            e.vmem("buffer_load_dword v%d, v%d, %s, 0 offen%s" % (vPF, 253, srd(S_TAB), " offset:128" if o.pfm else ""))
        if m & 8:
            e.vmem("buffer_load_dword v%d, v%d, %s, 0 offen" % (vPF, 180, srd(S_W1)))
    run(w1_items(2 * o.pre1))
    pfs(o.pfa)
    e.vmem("buffer_store_dword v%d, v%d, %s, 0 offen sc1" % (vXT + 2, vSLOT, srd(S_WS)), "marker")
    e.op("s_load_dwordx4 s[%d:%d], s[10:11], 0" % (sWW, sWW + 3))
    e.op("s_load_dwordx2 s[%d:%d], s[10:11], 16" % (sWW + 4, sWW + 5))
    e.op("s_load_dword s%d, s[10:11], 24" % (sWW + 6))
    e.op("s_load_dword s%d, s[12:13], 0" % sBW)
    e.op("s_load_dword s%d, s[20:21], 0" % sB2)
    for i in range(1, o.n1):
        for f in rot_unit(i):
            f()
    for (sd, sp) in [(S_XW, 8), (S_B1, 16), (S_W2, 18), (S_OUT, 22), (S_DBG, 24)]:
        base(sd, sp)
    e.op("v_lshrrev_b32 v13, 5, v%d" % vLANE)
    e.op("v_lshl_add_u32 v13, v%d, 1, v13" % vJ)
    e.op("v_mul_u32_u24 v13, 52, v13")
    e.op("v_lshlrev_b32 v14, 4, v%d" % vLANE)
    EXW = [6, 8, 9]
    IDXA = [10, 11, 12, 13]
    for tau in range(4):
        e.op("s_add_u32 s%d, s%d, %d" % (sT1, sW, 1 + tau))
        e.op("s_and_b32 s%d, s%d, 3" % (sT1, sT1))
        e.op("s_mul_i32 s%d, s%d, 3328" % (sT0, sT1))
        e.op("s_mul_i32 s%d, s%d, 24576" % (sT3, sT1))
        e.op("s_add_u32 s%d, s%d, %d" % (sT3, sT3, EXB + (tau * 8192 if tau < 3 else 0)))
        if tau < 3:
            e.op("v_add_u32 v%d, s%d, v14" % (EXW[tau], sT3))
        else:
            e.op("v_add_u32 v%d, s%d, v14" % (vEXR, sT3))
        e.op("v_add_u32 v%d, s%d, v13" % (IDXA[tau], sT0))
    e.op("s_waitcnt lgkmcnt(0)")
    e.wait(v="idx3")
    stamp("idxw")
    e.op("s_barrier")
    pfs(o.pfb)
    X = []
    for p in range(7):
        for tau in range(4):
            X.append(lambda tau=tau, p=p: e.lds("ds_read2_b32 %s, v%d offset0:%d offset1:%d" % (
                vr(vADDR + tau * 14 + 2 * p, 2), IDXA[tau], 2 * p, 2 * p + 1), "ix%d_%d" % (tau, p)))
    for p in range(7):
        for tau in range(4):
            X.append(lambda tau=tau, p=p: e.wait(l="ix%d_%d" % (tau, p)))
            for f in (2 * p, 2 * p + 1):
                if f >= 13:
                    continue
                a = vADDR + tau * 14 + f
                t = 14 + (f & 1)
                X.append(lambda a=a, t=t: e.op("v_add_lshl_u32 v%d, v%d, s%d, 2" % (t, a, sW4)))
                X.append(lambda a=a, t=t: e.op("v_and_or_b32 v%d, v%d, 48, s%d" % (t, t, sS1)))
                X.append(lambda a=a, t=t: e.op("v_lshl_add_u32 v%d, v%d, 6, v%d" % (a, a, t)))

    T = o.tail
    ST = NSTEP - T
    PAIRS = [(s, tau) for s in range(ST) for tau in range(4)] + [(s, tau) for tau in range(4) for s in range(ST, NSTEP)]

    def pkloc(s):
        return vPK + (s & 1) * 8 if (s <= 40 or not T) else vRAW + ((s - 1) % R) * 8

    def pack_items(s):
        b = vRAW + (s % R) * 8
        pk = pkloc(s)
        A = [b + m for m in range(4)]
        B = [b + 4 + m for m in range(4)]
        xA0, xA2, xB0, xB2 = vXT, vXT + 1, vXT + 2, vXT + 3

        def cnd(d, y, x):
            return lambda: e.op("v_cndmask_b32_dpp v%d, v%d, v%d, vcc row_ror:8 row_mask:0xf bank_mask:0xf" % (d, y, x))

        def mv(y, x):
            return lambda: e.op("v_mov_b32_dpp v%d, v%d row_ror:8 row_mask:0xf bank_mask:0x3" % (y, x))

        def sw(x, y):
            return lambda: e.op("v_permlane16_swap_b32 v%d, v%d" % (x, y))
        PA = [xA0, A[1], xA2, A[3]]
        PB = [xB0, B[1], xB2, B[3]]

        def pm(p, t):
            return lambda: e.op("v_perm_b32 v%d, v%d, v%d, s%d" % (pk + t * 4 + p, PB[p], PA[p], sSEL1 if t else sSEL0))
        w = lambda: e.wait(v="w1_%d_1" % s)
        P = o.cperm
        return [(0, w), (4, cnd(xA0, A[1], A[0])), (4, mv(A[1], A[0])), (4, cnd(xA2, A[3], A[2])),
                (4, mv(A[3], A[2])), (4, cnd(xB0, B[1], B[0])), (4, mv(B[1], B[0])),
                (4, cnd(xB2, B[3], B[2])), (4, mv(B[3], B[2])), (P, sw(xA0, xA2)), (P, sw(A[1], A[3])),
                (P, sw(xB0, xB2)), (P, sw(B[1], B[3])),
                (4, pm(0, 0)), (4, pm(2, 0)), (4, pm(1, 0)), (4, pm(3, 0)), (4, pm(0, 1)),
                (4, pm(2, 1)), (4, pm(1, 1)), (4, pm(3, 1))]

    rebased = set()
    rdone = [0]

    def aread(n):
        s, tau = PAIRS[n]
        q, f = divmod(s, 13)
        off = {0: SLOT, 1: 0, 2: SLOT, 3: 0}[q]
        a = vADDR + tau * 14 + f
        assert (a in rebased) == (q == 3), ("rebase order", n)
        rdone[0] = n + 1
        e.lds("ds_read_b128 %s, v%d offset:%d" % (ar(AFR + (n % 32) * 4, 4), a, off), "a%d" % n)

    for it in pack_items(0):
        X.append(it[1])
    nd = 16 - o.n1
    done = 0
    for i in range(nd):
        for f in rot_unit(o.n1 + i):
            f()
        want = min(len(X), (len(X) * (i + 1) * 100) // (nd * o.xsp))
        while done < want:
            X[done]()
            done += 1
    stamp("dmaend")
    pfs(o.pfc)
    run(w1_items(2 * (o.pre2 - o.pre1)))
    while done < len(X):
        X[done]()
        done += 1
    stamp("xform")
    e.wait(v="q1")
    e.op("s_barrier")
    stamp("q0")
    for n in range(8):
        aread(n)
    e.op("s_lshl_b32 s%d, s%d, 3" % (sT1, sMT))
    e.op("v_mov_b32 v11, s%d" % sT1)
    e.op("s_cmp_lg_u32 s%d, 0" % sW)
    e.op("s_cbranch_scc1 L_nosig")
    e.op("v_mov_b32 v15, 1")
    e.op("s_mov_b64 exec, 1")
    e.vmem("buffer_atomic_add v15, v11, %s, 0 offen sc1" % srd(S_DBG), count=False)
    e.op("s_mov_b64 exec, -1")
    e.label("L_nosig")

    def dma_items(i, lb, qo, tag):
        m, oo = (sWM15, sWO15) if i == 15 else (sWM, sWO)
        return [("s", lambda: e.op("s_add_u32 m0, s%d, %d" % (m, lb + i * 4096))),
                ("s", lambda: e.op("s_add_u32 s%d, s%d, %d" % (sDO, oo, i * 16384 + (qo & 128)))),
                ("v", lambda: e.vmem("buffer_load_dwordx4 v%d, %s, s%d offen lds" % (vTAB64 if qo & 64 else vTAB, srd(S_TAB), sDO), tag))]

    def dma_second(i, lb, qo, tag):
        return [("s", lambda: e.op("s_add_u32 m0, s%d, %d" % (sWM, lb + i * 4096))),
                ("v", lambda: e.vmem("buffer_load_dwordx4 v%d, %s, s%d offen lds" % (vTAB64 if qo & 64 else vTAB, srd(S_TAB), sDO), tag), 1)]

    dma_plan = {s: [] for s in range(NSTEP)}
    units = []
    for i in range(8):
        units.append(dma_items(i, S0, 128, "q2") + dma_second(i, Q3B, 192, "q3a"))
        units.append(dma_items(8 + i, S0, 128, "q2"))
    st = list(range(12, o.p1end + 1))
    for k, u in enumerate(units):
        dma_plan[st[k * len(st) // len(units)]] += u
    st = list(range(25, o.p2end + 1))
    for k in range(8):
        dma_plan[st[k * len(st) // 8]] += dma_items(8 + k, Q3B, 192, "q3b")

    def w1count(s):
        if s < 11:
            return o.w1p0
        if s <= o.p1end:
            return o.w1p1
        return o.w1p2

    vW2 = vRAW + 0
    CAP = 5
    BAR = {11: ("q1",), 24: ("q2", "q3a"), 37: ("q3b",)}
    late = {}

    top = max(vRAW + 8 * R, vRAW + 96)
    assert top + 16 + 16 + 8 + 2 <= 254, "no room for late operands"
    vB1R = top
    vW2 = top + 16
    vXW = top + 32
    vCNT = top + 40
    vLA = top + 41

    def late_items():
        it = []
        it.append(("s", lambda: e.op("v_lshrrev_b32 v%d, 5, v%d" % (vLA, vLANE))))
        it.append(("s", lambda: e.op("v_lshlrev_b32 v%d, 6, v%d" % (vLA, vLA))))
        it.append(("s", lambda: e.op("s_lshl_b32 s%d, s%d, 7" % (sT0, sNS))))
        for k, off in enumerate((0, 16, 32, 48)):
            it.append(("v", lambda k=k, off=off: e.vmem("buffer_load_dwordx4 %s, v%d, %s, s%d offen offset:%d" % (
                vr(vB1R + 4 * k, 4), vLA, srd(S_B1), sT0, off), "b1")))
        for k, off in enumerate((0, 16, 32, 48)):
            it.append(("v", lambda k=k, off=off: e.vmem("buffer_load_dwordx4 %s, v%d, %s, s%d offen offset:%d" % (
                vr(vW2 + 4 * k, 4), vLA, srd(S_W2), sT0, off), "w2")))
        it.append(("s", lambda: e.op("s_lshl_b32 s%d, s%d, 2" % (sT1, sMT))))
        it.append(("s", lambda: e.op("s_add_u32 s%d, s%d, s%d" % (sT1, sT1, sW))))
        it.append(("s", lambda: e.op("s_mul_i32 s%d, s%d, %d" % (sT1, sT1, 32 * 26))))
        it.append(("s", lambda: e.op("v_mul_u32_u24 v10, 26, v%d" % vJ)))
        it.append(("s", lambda: e.op("v_and_b32 v10, -4, v10")))
        it.append(("v", lambda: e.vmem("buffer_load_dwordx4 %s, v10, %s, s%d offen" % (vr(vXW, 4), srd(S_XW), sT1), "xw0")))
        it.append(("v", lambda: e.vmem("buffer_load_dwordx3 %s, v10, %s, s%d offen offset:16" % (vr(vXW + 4, 3), srd(S_XW), sT1), "xw")))
        return it

    LATE = late_items()
    late_steps = list(range(o.late0, o.late0 + 6))
    for k, s in enumerate(late_steps):
        late[s] = LATE[k * len(LATE) // len(late_steps):(k + 1) * len(LATE) // len(late_steps)]
    late[o.cnts] = [("v", lambda: e.vmem("buffer_load_dword v%d, v11, %s, 0 offen sc1" % (vCNT, srd(S_DBG)), "cnt"))]

    assert T == 6 and R == 12
    vO = vRAW + 24
    vP0, vP1 = 16, 48
    B1F = [vRAW + 56 + i for i in range(16)] + [228 + i for i in range(16)]
    PKQ = []
    for s in range(1, NSTEP):
        it = pack_items(s)
        PKQ += [(it[1][0], (lambda w=it[0][1], f=it[1][1]: (w(), f())))] + it[2:]
    pkdone = [0]
    ramp = [int(x) for x in o.ramp.split(",")]
    assert sum(ramp) == 20 * (T - 2)

    tg = {g: [] for g in range(8 * T)}
    WG = [int(x) for x in o.wgaps.split(",")]
    for tau in range(3):
        for k in range(8):
            tg[2 * T * (tau + 1) + WG[k]].append((o.cwr, lambda tau=tau, k=k: e.lds("ds_write_b128 v%d, %s offset:%d" % (
                EXW[tau], ar(AACC + tau * 32 + 4 * k, 4), 1024 * k), "xw%d_%d" % (tau, k))))
    rdq = [8]
    XR = {}
    for x in o.xr.split(","):
        a, b = x.split(":")
        XR[int(a)] = int(b)

    def xrd(p, vp, k):
        assert rdone[0] == 4 * NSTEP
        e.lds("ds_read_b128 %s, v%d offset:%d" % (vr(vp + 4 * k, 4), vEXR, p * 8192 + k * 1024), "x%d_%d" % (p, k))

    def xadd(p, vp, k):
        e.wait(l="x%d_%d" % (p, k))
        for hh in range(2):
            r = 4 * k + 2 * hh
            e.op("v_pk_add_f32 %s, %s, %s" % (vr(vO + r, 2), vr(vO + r, 2), vr(vp + r, 2)))
    for p, vp in ((0, vP0), (1, vP1)):
        mb = 2 * T * (p + 2) + o.midbar
        tg[mb].insert(0, (8, lambda p=p: (e.wait(l="xw%d_7" % p), e.op("s_barrier"))))
        for k in range(8):
            g = mb + (k * o.xrs) // 8
            tg[g].append((o.cds, lambda p=p, vp=vp, k=k: xrd(p, vp, k)))
            if p == 0:
                assert g + o.xlat < 6 * T - 1
                tg[g + o.xlat].append((8, lambda k=k: xadd(0, vP0, k)))
    tflex = []
    for i in range(32):
        tflex.append((4, lambda i=i: e.op("v_accvgpr_read_b32 v%d, a%d" % (vO + i, AACC + 96 + i))))
    tflex.append((4, lambda: e.wait(v="b1")))
    for i in range(16):
        sr = vB1R + 4 * (i & 3) + (i >> 2)
        tflex.append((4, lambda i=i, sr=sr: e.op("v_lshlrev_b32 v%d, 16, v%d" % (B1F[i], sr))))
        tflex.append((4, lambda i=i, sr=sr: e.op("v_and_b32 v%d, s%d, v%d" % (B1F[16 + i], sHI, sr))))
    tfl = {ST: tflex[8:20], ST + 1: tflex[20:32] + tflex[:8], ST + 2: tflex[32:52], ST + 4: tflex[52:58], ST + 5: tflex[58:]}
    if o.tfm == 1:
        tfl = {ST: tflex[8:20], ST + 1: tflex[20:32] + tflex[:8]}
    if o.tfm == 2:
        tfl = {}

    e.inloop = True
    e.x = o.x
    CV = o.cvm
    for s in range(NSTEP):
        e.c("---- block %d" % s)
        gaps = [[] for _ in range(8)]
        used = [0] * 8
        rd = {1: 0, 3: 1, 5: 2, 7: 3}

        def put(g, c, f):
            gaps[g].append(f)
            used[g] += c
        if s in BAR:
            def bar(s=s):
                if not o.tst:
                    stamp("pre%d" % s)
                e.wait(v=BAR[s][-1] if e.vtag[BAR[s][-1]] > e.vtag[BAR[s][0]] else BAR[s][0], l="all")
                e.op("s_barrier")
                if not o.tst:
                    stamp("post%d" % s)
            put(3, 8, bar)
            rd = {3: 0, 4: 1, 5: 2, 7: 3}
        rg = sorted(rd.keys())
        if s in XR:
            rg = sorted(rg + [0, 4, 2, 6, 1, 5, 3, 7][:XR[s]])
        for g in rg:
            if rdq[0] < 4 * NSTEP:
                put(g, o.cds, lambda n=rdq[0]: aread(n))
                rdq[0] += 1
        if s >= ST:
            for g in range(8):
                for c, f in tg[8 * (s - ST) + g]:
                    put(g, c, f)
                if g & 1:
                    used[g] += 4
        else:
            used[7] += 4
        npk = 20
        if 0 <= s - (ST - len(ramp)) < len(ramp):
            npk += ramp[s - (ST - len(ramp))]
        pk = PKQ[pkdone[0]:pkdone[0] + npk]
        pkdone[0] += len(pk)
        lastpk = min(NSTEP - 1, (pkdone[0] + 19) // 20)
        nw = w1count(s)
        nw = max(0, min(nw, 2 * (s + R) - w1next[0]))
        wi = w1_items(nw)
        assert w1next[0] >= min(NSTEP * 2, 2 * (lastpk + 2)), ("W1 lead too small", s, w1next[0])
        di = dma_plan[s] + late.get(s, [])
        if 0 <= s - o.reb < 13:
            for tau in range(4):
                a = vADDR + tau * 14 + (s - o.reb)
                di.append(("s", lambda a=a: (rebased.add(a), e.op("v_subrev_u32 v%d, s%d, v%d" % (a, sS1, a)))))
        flex = []
        a, b = list(wi), list(di)
        while a or b:
            while a:
                it = a.pop(0)
                flex.append(it)
                if it[0] == "v":
                    break
            nv = 0
            while b:
                it = b.pop(0)
                flex.append(it)
                if it[0] == "v" and not (len(b) >= 2 and b[1][0] == "v" and len(b[1]) > 2):
                    break
        flex = [(CV if it[0] == "v" else 4, it[1]) for it in flex] + tfl.get(s, [])
        tp, tf = sum(c for c, _ in pk), sum(c for c, _ in flex)
        merged = []
        ip = jf = 0
        cp = cf = 0.0
        while ip < len(pk) or jf < len(flex):
            fp = cp / tp * 0.9 if tp else 2
            ff = cf / tf if tf else 2
            if ip < len(pk) and (jf >= len(flex) or fp <= ff):
                merged.append(pk[ip]); cp += pk[ip][0]; ip += 1
            else:
                merged.append(flex[jf]); cf += flex[jf][0]; jf += 1
        total = sum(used) + tp + tf
        cap = o.mincap
        while True:
            u = list(used)
            g = 0
            pl = []
            for (c, f) in merged:
                while g < 7 and u[g] + c > cap:
                    g += 1
                u[g] += c
                pl.append(g)
            if u[7] <= max(cap, used[7]):
                break
            cap += 4
        for (c, f), g in zip(merged, pl):
            put(g, c, f)
        if o.verbose:
            print("block", s, "cost", total, used)
        for m in range(8):
            n, t = 4 * s + (m >> 1), m & 1
            if o.tst and ("%d.%d" % (s, m)) in o.tst.split(","):
                stamp("b%d.%d" % (s, m))
            ps, tau = PAIRS[n]
            if m == 0 and s < ST:
                e.wait(v="w1_%d_1" % (s + 1), l="a%d" % (n + (0 if s == 0 else 3)))
            elif t == 0:
                e.wait(l="a%d" % n)
            acc_r = vr(vO + t * 16, 16) if (s >= ST and tau == 3) else ar(AACC + tau * 32 + t * 16, 16)
            e.op("v_mfma_f32_32x32x16_bf16 %s, %s, %s, %s" % (
                acc_r, vr(pkloc(ps) + t * 4, 4), ar(AFR + (n % 32) * 4, 4), "0" if s == 0 else acc_r))
            for it in gaps[m]:
                it()
            if m == 7 and e.L[-1].strip().startswith("v_perm_b32"):
                e.op("s_nop 0")
    e.inloop = False
    stamp("loop")
    e.wait(l="all")
    e.op("s_barrier")
    stamp("exbar")
    for k in range(8):
        xrd(2, vP0, k)
    e.op("s_nop 3")
    for k in range(8):
        xadd(1, vP1, k)
    for k in range(8):
        xadd(2, vP0, k)
    for i in range(32):
        e.op("v_cvt_pk_bf16_f32 v%d, 0, v%d" % (vO + i, vO + i))
    for r in range(0, 32, 2):
        e.op("v_pk_add_f32 %s, %s, %s" % (vr(vO + r, 2), vr(vO + r, 2), vr(B1F[r], 2)))
    for i in range(16):
        e.op("v_cvt_pk_bf16_f32 v%d, v%d, v%d" % (vO + i, vO + i, vO + 16 + i))
    for i in range(16):
        e.op("v_pk_max_i16 v%d, v%d, 0" % (vO + i, vO + i))
    e.wait(v="w2")
    e.op("v_mov_b32 v12, 0")
    for i in range(16):
        e.op("v_dot2_f32_bf16 v12, v%d, v%d, v12" % (vO + i, vW2 + 4 * (i & 3) + (i >> 2)))
    e.op("s_nop 2")
    e.op("v_mov_b32 v13, v12")
    e.op("s_nop 1")
    e.op("v_permlane32_swap_b32 v13, v12")
    e.op("v_add_f32 v12, v12, v13")
    stamp("epi")
    e.op("s_cmp_eq_u32 s%d, 0" % sNS)
    e.op("v_min_u32 v12, -2, v12")
    e.op("s_cbranch_scc1 L_final")
    if o.hst == 3:
        e.op("s_mov_b32 exec_hi, 0")
        e.vmem("buffer_atomic_swap v12, v%d, %s, 0 offen sc1" % (vSLOT, srd(S_WS)))
        e.op("s_mov_b32 exec_hi, -1")
    else:
        e.vmem("buffer_store_dword v12, v%d, %s, 0 offen %s" % (vSLOT, srd(S_WS), ["sc1", "sc0 sc1", "sc1 nt"][o.hst]))
    stamp_out()
    e.op("s_endpgm")
    e.label("L_final")
    e.op("v_lshrrev_b32 v13, 5, v%d" % vLANE)
    e.op("v_lshl_add_u32 v13, v13, 11, v%d" % vSLOT)
    e.op("s_mov_b32 s%d, 0" % sT3)
    e.wait(v="cnt")
    e.label("L_cnt")
    e.op("v_readfirstlane_b32 s%d, v%d" % (sT0, vCNT))
    e.op("s_cmp_ge_u32 s%d, 8" % sT0)
    e.op("s_cbranch_scc1 L_poll")
    e.op("buffer_load_dword v%d, v11, %s, 0 offen sc1" % (vCNT, srd(S_DBG)))
    e.op("s_add_u32 s%d, s%d, 1" % (sT3, sT3))
    e.op("s_cmp_gt_u32 s%d, %d" % (sT3, o.maxpoll))
    e.op("s_waitcnt vmcnt(0)")
    e.op("s_cbranch_scc0 L_cnt")
    e.label("L_poll")

    def pl(b):
        for k in range(4):
            e.op("buffer_load_dword v%d, v13, %s, 0 offen offset:%d sc1" % (b + k, srd(S_WS), 512 * k))

    def chk(b):
        e.op("s_waitcnt vmcnt(4)")
        e.op("s_mov_b32 exec_hi, 0")
        e.op("v_mov_b32 v%d, v12" % b)
        e.op("s_mov_b32 exec_hi, -1")
        e.op("v_max_u32 v20, v%d, v%d" % (b, b + 1))
        e.op("v_max3_u32 v20, v20, v%d, v%d" % (b + 2, b + 3))
        e.op("v_cmp_eq_u32 vcc, -1, v20")
        e.op("v_add_f32 v44, v%d, v%d" % (b, b + 1))
        e.op("v_add_f32 v45, v%d, v%d" % (b + 2, b + 3))
        e.op("s_cbranch_vccz L_go")
        pl(b)
    pl(36)
    e.op("v_and_b32 v14, 1, v%d" % vJ)
    e.op("v_lshlrev_b32 v14, 4, v14")
    for k in range(7):
        e.op("v_alignbit_b32 v%d, v%d, v%d, v14" % (24 + k, vXW + min(k + 1, 6), vXW + k))
    e.op("v_and_b32 v30, 0xffff, v30")
    e.op("s_and_b32 s%d, s%d, 0xffff" % (sWW + 6, sWW + 6))
    e.op("v_mov_b32 v15, 0")
    for k in range(7):
        e.op("v_dot2_f32_bf16 v15, v%d, s%d, v15" % (24 + k, sWW + k))
    e.op("s_lshl_b32 s%d, s%d, 16" % (sT1, sBW))
    e.op("s_lshl_b32 s%d, s%d, 16" % (sT2, sB2))
    e.op("s_nop 1")
    e.op("v_cvt_pk_bf16_f32 v15, 0, v15")
    e.op("v_add_f32 v15, s%d, v15" % sT1)
    e.op("v_cvt_pk_bf16_f32 v15, 0, v15")
    pl(32)
    e.label("L_pl2")
    chk(36)
    e.op("s_add_u32 s%d, s%d, 1" % (sT3, sT3))
    chk(32)
    e.op("s_cmp_gt_u32 s%d, %d" % (sT3, o.maxpoll))
    e.op("s_cbranch_scc0 L_pl2")
    e.label("L_go")
    e.op("v_add_f32 v16, v44, v45")
    e.op("v_mov_b32 v17, v16")
    e.op("s_nop 1")
    e.op("v_permlane32_swap_b32 v17, v16")
    e.op("v_add_f32 v16, v16, v17")
    e.op("v_cvt_pk_bf16_f32 v16, 0, v16")
    e.op("v_add_f32 v16, s%d, v16" % sT2)
    e.op("v_cvt_pk_bf16_f32 v16, 0, v16")
    e.op("v_add_f32 v16, v15, v16")
    e.op("v_cvt_pk_bf16_f32 v16, 0, v16")
    e.op("v_mul_f32 v16, 0xbfb8aa3b, v16")
    e.op("v_exp_f32 v16, v16")
    e.op("s_nop 0")
    e.op("v_add_f32 v16, 1.0, v16")
    e.op("v_rcp_f32 v16, v16")
    e.op("s_lshl_b32 s%d, s%d, 2" % (sT1, sMT))
    e.op("s_add_u32 s%d, s%d, s%d" % (sT1, sT1, sW))
    e.op("s_lshl_b32 s%d, s%d, 6" % (sT1, sT1))
    e.op("v_cvt_pk_bf16_f32 v16, v16, v16")
    e.op("v_lshlrev_b32 v17, 1, v%d" % vJ)
    e.op("s_mov_b32 exec_hi, 0")
    e.op("buffer_store_short v16, v17, %s, s%d offen" % (srd(S_OUT), sT1))
    e.op("s_waitcnt vmcnt(0)")
    stamp_out()
    if o.stamp:
        print('stamps:', stamps)
    e.label("L_end")
    e.op("s_endpgm")
    e.op("Lpfc_end:")

    txt = HEADER + "; @launch grid=(256,1,1) block=(256,1,1) lds=%d\n" % LDS_TOTAL
    txt += '.amdgcn_target "amdgcn-amd-amdhsa--gfx950"\n.text\n.globl %s_kernel\n.p2align 8\n.type %s_kernel,@function\n%s_kernel:\n' % (NAME, NAME, NAME)
    txt += "\n".join(e.L) + "\n"
    txt += """.section .rodata,"a"
.p2align 6
.amdhsa_kernel %s_kernel
  .amdhsa_next_free_vgpr 512
  .amdhsa_next_free_sgpr 102
  .amdhsa_accum_offset 256
  .amdhsa_group_segment_fixed_size 0
  .amdhsa_kernarg_size 96
  .amdhsa_user_sgpr_count 2
  .amdhsa_user_sgpr_kernarg_segment_ptr 1
  .amdhsa_system_sgpr_workgroup_id_x 1
.end_amdhsa_kernel
""" % NAME
    return txt


def main():
    ap = argparse.ArgumentParser()
    ap.add_argument("-o", default="cdna_kernels/%s.s" % NAME)
    ap.add_argument("--ring", type=int, default=12)
    ap.add_argument("--pre1", type=int, default=1)
    ap.add_argument("--pre2", type=int, default=5)
    ap.add_argument("--w1p0", type=int, default=3)
    ap.add_argument("--w1p1", type=int, default=1)
    ap.add_argument("--w1p2", type=int, default=3)
    ap.add_argument("--p1end", type=int, default=22)
    ap.add_argument("--p2end", type=int, default=32)
    ap.add_argument("--pair0", type=int, default=1)
    ap.add_argument("--prefetch", type=int, default=1)
    ap.add_argument("--nsmap", type=int, default=0)
    ap.add_argument("--maxpoll", type=int, default=200000)
    ap.add_argument("--x", type=int, default=0)
    ap.add_argument("--pfall", type=int, default=0)
    ap.add_argument("--delay", type=int, default=0)
    ap.add_argument("--stamp", type=int, default=0)
    ap.add_argument("--stampwg", type=int, default=0)
    ap.add_argument("--rt", type=int, default=0)
    ap.add_argument("--n1", type=int, default=2)
    ap.add_argument("--xsp", type=int, default=100)
    ap.add_argument("--cperm", type=int, default=8)
    ap.add_argument("--cvm", type=int, default=8)
    ap.add_argument("--cds", type=int, default=4)
    ap.add_argument("--lw", type=int, default=1)
    ap.add_argument("--late0", type=int, default=3)
    ap.add_argument("--cnts", type=int, default=46)
    ap.add_argument("--verbose", type=int, default=0)
    ap.add_argument("--mincap", type=int, default=16)
    ap.add_argument("--tail", type=int, default=6)
    ap.add_argument("--tst", default="")
    ap.add_argument("--pfa", type=int, default=1)
    ap.add_argument("--pf0", type=int, default=0)
    ap.add_argument("--pfm", type=int, default=2)
    ap.add_argument("--hst", type=int, default=0)
    ap.add_argument("--hld", type=int, default=0)
    ap.add_argument("--pfb", type=int, default=8)
    ap.add_argument("--pfc", type=int, default=2)
    ap.add_argument("--fl", type=int, default=0)
    ap.add_argument("--tfm", type=int, default=0)
    ap.add_argument("--ramp", default="4,4,4,4,4,12,12,12,12,12")
    ap.add_argument("--wgaps", default="1,2,4,5,7,8,10,11")
    ap.add_argument("--cwr", type=int, default=8)
    ap.add_argument("--midbar", type=int, default=2)
    ap.add_argument("--xrs", type=int, default=6)
    ap.add_argument("--xr", default="39:1,40:1,41:1,42:2,43:2,44:2,45:2,46:3")
    ap.add_argument("--xlat", type=int, default=3)
    ap.add_argument("--reb", type=int, default=29)
    o = ap.parse_args()
    open(o.o, "w").write(gen(o))


if __name__ == "__main__":
    main()
```
